```python
import torch

def _softmax(x, axis=-1):
    return torch.softmax(x, dim=axis)
def _gelu(x):
    return torch.nn.functional.gelu(x, approximate="tanh")
def _silu(x):
    return torch.nn.functional.silu(x)
def _sigmoid(x):
    return torch.sigmoid(x)
def _layernorm(x, axis=-1, eps=1e-5):
    m = x.mean(dim=axis, keepdim=True)
    v = x.var(dim=axis, keepdim=True, unbiased=False)
    return (x - m) / torch.sqrt(v + eps)
def _scatter_add(tgt, idx, src, axis=0):
    return tgt.clone().index_add_(axis, idx, src)
def _segment_sum(src, seg, n):
    out = torch.zeros((n,) + src.shape[1:], dtype=src.dtype)
    return out.index_add_(0, seg, src)
def _pad(x, pw):
    flat = tuple(v for pair in reversed(pw) for v in pair)
    return torch.nn.functional.pad(x, flat)

kernel_name = 'standalone__normalfloat_lut_af4__prompt'

def setup_inputs():

    _w = (lambda a: (lambda t: t.to(torch.bfloat16) if t.is_floating_point() else t)(torch.as_tensor(a)))
    B, S, D, F = 1, 2048, 1024, 3584
    G = -1 if -1 > 0 else D
    D = (D // G) * G
    ng = D // G
    nf4 = torch.tensor([
        -1.0, -0.6961928009986877, -0.5250730514526367, -0.39491748809814453,
        -0.28444138169288635, -0.18477343022823334, -0.09105003625154495, 0.0,
        0.07958029955625534, 0.16093020141124725, 0.24611230194568634,
        0.33791524171829224, 0.44070982933044434, 0.5626170039176941,
        0.7229568362236023, 1.0,
    ], dtype=float)
    qw = torch.randint(0, 16, (D, F)).to(torch.int64)
    return {
        "x": _w((lambda *s: torch.randn(*s, dtype=torch.bfloat16) * 0.05)(B, S, D)),
        "qw": _w(qw),
        "lut": _w(nf4),
        "scales": _w(torch.abs((lambda *s: torch.randn(*s, dtype=torch.bfloat16) * 0.05)(ng, F)).to(float) + 0.01),
    }

def reference(x, qw, lut, scales):
    B, S, D = x.shape
    ng, F = scales.shape
    G = D // ng
    deq = lut[qw]
    s = (lambda x, n, axis: torch.repeat_interleave(x, n, dim=axis))(scales, G, axis=0)
    w = (lambda x, dt: x.to(dt))(deq, x.dtype) * (lambda x, dt: x.to(dt))(s, x.dtype)
    return torch.einsum("bsd,df->bsf", x, w)
```

```python
KNAME = 'standalone__normalfloat_lut_af4__prompt_kernel'
HDR = """; Kernarg layout for this problem (56 bytes, ptrs only, base s[0:1]):
"""
class Asm:
    def __init__(self):
        self.lines = []
    def __call__(self, s=''):
        for l in s.split('\n'):
            l = l.strip()
            if not l: continue
            if l.endswith(':'): self.lines.append(l)
            else: self.lines.append('    ' + l)
    def text(self):
        return '\n'.join(self.lines) + '\n'

def kernel_text(name, body, vgpr=256, sgpr=102, accum=256):
    return f""".text
.globl {name}
.p2align 8
.type {name},@function
{name}:
{body}
"""
def kd_text(name, vgpr=256, sgpr=102, accum=256):
    return f""".amdhsa_kernel {name}
  .amdhsa_next_free_vgpr {vgpr}
  .amdhsa_next_free_sgpr {sgpr}
  .amdhsa_accum_offset {accum}
  .amdhsa_group_segment_fixed_size 0
  .amdhsa_kernarg_size 56
  .amdhsa_user_sgpr_count 2
  .amdhsa_user_sgpr_kernarg_segment_ptr 1
  .amdhsa_system_sgpr_workgroup_id_x 1
.end_amdhsa_kernel
"""
def single(body, grid, block, lds, vgpr=256, sgpr=102, accum=256, notes=''):
    s = HDR + notes + f'; @launch grid=({grid},1,1) block=({block},1,1) lds={lds}\n'
    s += '.amdgcn_target "amdgcn-amd-amdhsa--gfx950"\n'
    s += kernel_text(KNAME, body)
    s += '.section .rodata,"a"\n.p2align 6\n' + kd_text(KNAME, vgpr, sgpr, accum)
    return s
def multi(kerns, notes=''):
    s = HDR + notes
    for k in kerns:
        s += f"; @launch kernel={k['name']} grid=({k['grid']},1,1) block=({k['block']},1,1) lds={k['lds']}\n"
    s += '.amdgcn_target "amdgcn-amd-amdhsa--gfx950"\n'
    seen = []
    for k in kerns:
        if k['name'] in seen: continue
        seen.append(k['name'])
        s += kernel_text(k['name'], k['body'])
    s += '.section .rodata,"a"\n'
    seen = []
    for k in kerns:
        if k['name'] in seen: continue
        seen.append(k['name'])
        s += '.p2align 6\n' + kd_text(k['name'], k.get('vgpr', 256), k.get('sgpr', 102), k.get('accum', 256))
    return s

STAMP_OFF = 128 << 20
def stamp_begin(a, sreg):
    a(f's_memrealtime s[{sreg}:{sreg+1}]')
    a(f's_memtime s[{sreg+2}:{sreg+3}]')
def stamp_end(a, sreg, s_tmp, wg_s, vtmp, kernarg='s[0:1]', nst=4, extra=()):
    t = s_tmp
    a(f's_load_dwordx2 s[{t}:{t+1}], {kernarg}, 48')
    a(f's_memrealtime s[{t+4}:{t+5}]')
    a(f's_memtime s[{t+6}:{t+7}]')
    a('s_waitcnt lgkmcnt(0)')
    a(f's_add_u32 s{t}, s{t}, {STAMP_OFF}')
    a(f's_addc_u32 s{t+1}, s{t+1}, 0')
    a(f's_mov_b32 s{t+2}, 0x100000')
    a(f's_mov_b32 s{t+3}, 0x20000')
    a(f'v_cmp_eq_u32 vcc, 0, v0')
    a(f's_and_saveexec_b64 s[{t+8}:{t+9}], vcc')
    a(f's_cbranch_execz L_stamp_done')
    a(f's_mul_i32 s{t+10}, s{wg_s}, {nst*8}')
    srcs = [(sreg, sreg+1), (t+4, t+5), (sreg+2, sreg+3), (t+6, t+7)] + list(extra)
    a(f'v_mov_b32 v{vtmp+2}, s{t+10}')
    for i, (lo, hi) in enumerate(srcs):
        a(f'v_mov_b32 v{vtmp}, s{lo}')
        a(f'v_mov_b32 v{vtmp+1}, s{hi}')
        a(f'buffer_store_dwordx2 v[{vtmp}:{vtmp+1}], v{vtmp+2}, s[{t}:{t+3}], 0 offen offset:{i*8}')
        a('s_nop 1')
    a('L_stamp_done:')
    a(f's_mov_b64 exec, s[{t+8}:{t+9}]')
```

```python
import re
REG = re.compile(r'\b([vas])(\d+)\b|\b([vas])\[(\d+):(\d+)\]|\b(vcc|exec|m0|scc)\b')
def regs_of(tok):
    out = []
    for m in REG.finditer(tok):
        if m.group(1): out.append(m.group(1) + m.group(2))
        elif m.group(3): out += [m.group(3) + str(i) for i in range(int(m.group(4)), int(m.group(5)) + 1)]
        else: out.append(m.group(6))
    return out
class I:
    def __init__(self, text, defs=(), uses=(), nohoist=False):
        self.text = text.strip()
        self.nohoist = nohoist
        t = self.text.split(';')[0].strip()
        self.label = t.endswith(':') or t.startswith('.')
        op, _, rest = t.partition(' ')
        self.op = op
        ops = [o.strip() for o in rest.split(',')] if rest else []
        r = [regs_of(o) for o in ops]
        flat = lambda l: set(x for y in l for x in y)
        self.w = set(); self.r = set(); self.kind = 'S'; self.srcc = set(); self.stdata = set()
        if self.label: self.kind = 'L'
        elif op.startswith('v_mfma'):
            self.kind = 'M'; self.w = set(r[0]); self.r = flat(r[1:]); self.srcc = set(r[3])
        elif op.startswith('ds_'):
            self.kind = 'D'
            if op.startswith('ds_write') or op.startswith('ds_add'): self.r = flat(r)
            else: self.w = set(r[0]); self.r = flat(r[1:])
        elif op.startswith('buffer_') or op.startswith('global_'):
            self.kind = 'G'
            if op in ('buffer_inv', 'buffer_wbl2'): pass
            elif re.search(r'\blds\b', t): self.r = flat(r) | {'m0'}
            elif 'store' in op or 'atomic' in op:
                self.r = flat(r)
                di = 0 if op.startswith('buffer_') else 1
                if op.endswith('x4') or op.endswith('x3'): self.stdata = set(r[di])
                if 'atomic' in op and 'sc0' in t: self.w = set(r[0])
            else:
                self.w = set(r[0]); self.r = flat(r[1:])
                if 'd16' in op: self.r |= self.w
        elif op.startswith('v_'):
            self.kind = 'V'
            self.w = set(r[0]); self.r = flat(r[1:])
            if op.startswith('v_permlane') or op.startswith('v_swap'): self.w = flat(r); self.r = flat(r)
            if op.startswith('v_fmac') or op.startswith('v_writelane'): self.r |= self.w
            if '_co_' in op: self.w |= set(r[1])
        elif op.startswith('s_'):
            if op.startswith('s_cmp') or op.startswith('s_bitcmp'): self.r = flat(r); self.w = {'scc'}
            elif op in ('s_waitcnt', 's_nop', 's_barrier', 's_endpgm', 's_sleep', 's_setprio') or op.startswith('s_cbranch') or op == 's_branch': pass
            else:
                self.w = set(r[0]); self.r = flat(r[1:])
                if op.startswith('s_load') or op.startswith('s_mem') or op.startswith('s_buffer_load'): self.kind = 'K'
        self.defs = set(defs) | (self.w if self.kind in 'DG' else set())
        self.uses = set(uses) | self.r | self.w
    def __repr__(self): return self.text

def insert_waits(st):
    waits = {}
    for cls, key, mx in (('D', 'lgkm', 15), ('G', 'vm', 63)):
        issued = []
        retired = 0
        for p, ins in enumerate(st):
            if ins.op == 's_waitcnt':
                m = re.search(key + r'cnt\((\d+)\)', ins.text)
                if m: retired = max(retired, len(issued) - int(m.group(1)))
            need = -1
            for j in range(len(issued) - 1, retired - 1, -1):
                pr = st[issued[j]]
                u = ins.uses
                if ins.kind == cls and 'd16' in ins.op: u = u - ins.w
                if pr.defs & u: need = j; break
            if need >= 0:
                q = p
                if not ins.nohoist:
                    b = p - 1
                    while b >= 0 and p - b <= 4 and st[b].kind not in 'ML' and st[b].op != 's_barrier': b -= 1
                    if b >= 0 and st[b].kind == 'M' and b > issued[need]: q = b + 1
                n = sum(1 for x in issued[need + 1:] if x < q)
                n = min(n, mx)
                d = waits.setdefault(q, {})
                d[key] = min(d.get(key, 99), n)
                cnt_q = sum(1 for x in issued if x < q)
                retired = max(retired, cnt_q - n)
            if ins.kind == cls: issued.append(p)
    out = []
    for p, ins in enumerate(st):
        if p in waits:
            d = waits[p]
            out.append(I('s_waitcnt ' + ' '.join(f'{k}cnt({v})' for k, v in sorted(d.items(), reverse=True))))
        out.append(ins)
    return out

def states(ins):
    if ins.kind == 'L': return 0
    if ins.op == 's_nop': return int(ins.text.split()[1], 0) + 1
    return 1
def check_hazards(st, fix=False):
    out = []
    probs = []
    for ins in st:
        need = 0; why = ''
        dist = 0
        for pv in reversed(out):
            if dist >= 20: break
            req = 0
            vs = lambda s: set(x for x in s if x[0] in 'va' and x != 'vcc')
            ss = lambda s: set(x for x in s if x[0] == 's' and x != 'scc' or x == 'vcc')
            if pv.kind == 'V' and ins.kind == 'M' and vs(pv.w) & ins.r: req = 2
            if pv.kind == 'V' and pv.op.startswith('v_dot') and vs(pv.w) & (ins.r | ins.w): req = max(req, 3)
            if pv.kind == 'M':
                npass = 4 if '16x16x32' in pv.op else 8
                t = {4: (6, 8, 8, 3), 8: (10, 12, 12, 7)}[npass]
                if ins.kind == 'M':
                    if pv.w & (ins.r - ins.srcc): req = max(req, t[1])
                    elif pv.w & ins.srcc and pv.w != ins.srcc: req = max(req, t[0])
                    elif pv.w & ins.w and pv.w != ins.srcc: req = max(req, t[0])
                elif ins.kind in 'VDG' and pv.w & (ins.r | ins.w): req = max(req, t[2])
                if ins.kind == 'V' and pv.srcc & ins.w: req = max(req, t[3])
            if pv.kind == 'S' and 'm0' in pv.w and ins.kind == 'G' and 'm0' in ins.r: req = max(req, 1)
            if pv.stdata and pv.stdata & ins.w: req = max(req, 2)
            if pv.kind == 'V' and ss(pv.w):
                if ins.kind == 'G' and ss(pv.w) & ins.r: req = max(req, 5)
                if ins.kind == 'V' and ss(pv.w) & ins.r: req = max(req, 4 if 'lane' in ins.op else 2)
            if pv.kind == 'V' and ins.op in ('v_readfirstlane_b32', 'v_readlane_b32') and vs(pv.w) & ins.r: req = max(req, 1)
            if pv.kind == 'V' and ins.op.startswith('v_permlane') and vs(pv.w) & ins.r: req = max(req, 2)
            if pv.kind == 'V' and ins.kind == 'V' and ('dpp' in ins.text or 'row_' in ins.text or 'quad_perm' in ins.text) and vs(pv.w) & ins.r: req = max(req, 2)
            if pv.kind == 'V' and ins.kind == 'V' and ('sdwa' in pv.op or 'op_sel' in pv.text) and vs(pv.w) & (ins.r | ins.w): req = max(req, 1)
            if req - dist > need: need = req - dist; why = f'{pv.text} -> {ins.text} req {req} dist {dist}'
            dist += states(pv)
        if need > 0:
            probs.append(why)
            if fix: out.append(I(f's_nop {need - 1}'))
        out.append(ins)
    return out, probs

class Stream:
    def __init__(self): self.l = []
    def __call__(self, s, **kw):
        if isinstance(s, I): self.l.append(s); return
        for x in s.split('\n'):
            if x.strip(): self.l.append(I(x, **kw))
    def finish(self, verbose=True):
        st = insert_waits(self.l)
        st, probs = check_hazards(st, fix=True)
        if verbose:
            for p in probs: print('  nop:', p)
        return st
def render(st):
    return '\n'.join(i.text if i.kind == 'L' else '    ' + i.text for i in st) + '\n'
```

```python
import sys
sys.path.insert(0, 'tools')
from asmlib import *
from sched import *

M, K, N = 2048, 1024, 3584
QROW = N * 4
RS = 464
RING = 65536

def pack_kernel(xpf=True, aux_st='', aux_ld=''):
    s = Stream()
    s('s_cmp_ge_u32 s2, 448\ns_cbranch_scc1 L_pack_end')
    s('s_load_dwordx4 s[4:7], s[0:1], 0\ns_load_dwordx2 s[12:13], s[0:1], 48')
    s('v_lshrrev_b32 v1, 6, v0')
    s('v_and_b32 v2, 63, v0')
    s('v_readfirstlane_b32 s3, v1')
    s('v_lshlrev_b32 v3, 4, v2')
    s('s_lshl_b32 s16, s2, 2\ns_add_u32 s16, s16, s3')
    s(f's_mul_hi_u32 s17, s16, {(2**32 + 13)//14}')
    s('s_mul_i32 s18, s17, 14\ns_sub_u32 s18, s16, s18')
    s('s_lshl_b32 s18, s18, 10')
    s(f's_mul_i32 s19, s17, {8*QROW}\ns_add_u32 s19, s19, s18')
    s(f's_mul_i32 s20, s17, {QROW}\ns_add_u32 s20, s20, s18')
    s('s_waitcnt lgkmcnt(0)')
    s(f's_mov_b32 s8, s6\ns_mov_b32 s9, s7\ns_mov_b32 s10, {K*QROW}\ns_mov_b32 s11, 0x20000')
    s(f's_mov_b32 s14, {K//8*QROW}\ns_mov_b32 s15, 0x20000')
    for e in range(8):
        s(f'buffer_load_dwordx4 v[{8+4*e}:{11+4*e}], v3, s[8:11], s19 offen {aux_ld}')
        if e < 7: s(f's_add_u32 s19, s19, {QROW}')
    if xpf:
        s(f's_mov_b32 s6, {M*K*2}\ns_mov_b32 s7, 0x20000')
        s('s_lshl_b32 s21, s16, 13')
        s('v_lshlrev_b32 v4, 7, v2')
        s('buffer_load_dword v5, v4, s[4:7], s21 offen')
    for e in range(1, 8):
        for c in range(4):
            s(f'v_lshl_or_b32 v{8+c}, v{8+4*e+c}, {4*e}, v{8+c}')
    s(f'buffer_store_dwordx4 v[8:11], v3, s[12:15], s20 offen {aux_st}')
    s('L_pack_end:')
    s('s_endpgm')
    return render(s.finish())

def gemm_kernel(stamps=False, aux_out='sc1', xm=4, cpf=False):
    s = Stream()
    ACC = lambda t, i: 128 + (t * 8 + i) * 4
    XF = lambda b, i, st: b * 64 + (i * 2 + st) * 4
    WF = lambda G, st: 128 + G * 8 + st * 4
    CODE = lambda it: 64 + (it % 4) * 16
    slot = lambda it: (it + 1) % 3
    s('s_cmp_ge_u32 s2, 256\ns_cbranch_scc1 L_end')
    if stamps: s('s_memrealtime s[80:81]\ns_memtime s[82:83]')
    s('s_load_dwordx2 s[8:9], s[0:1], 0\ns_load_dwordx4 s[20:23], s[0:1], 16\ns_load_dwordx2 s[16:17], s[0:1], 32\ns_load_dwordx2 s[12:13], s[0:1], 48')
    lm = {2: 1, 4: 2, 8: 3, 16: 4}[xm]
    gm = 16 // xm
    lgm = 4 - lm
    s('s_and_b32 s60, s2, 7\ns_lshr_b32 s61, s2, 3')
    s(f's_and_b32 s58, s60, {gm-1}\ns_lshl_b32 s58, s58, {lm}\ns_and_b32 s62, s61, {xm-1}\ns_add_u32 s58, s58, s62')
    s(f's_lshr_b32 s59, s60, {lgm}\ns_lshl_b32 s59, s59, {5-lm}\ns_lshr_b32 s62, s61, {lm}\ns_add_u32 s59, s59, s62')
    s('v_lshrrev_b32 v1, 6, v0\nv_and_b32 v2, 63, v0')
    s('v_readfirstlane_b32 s63, v1')
    s('v_lshrrev_b32 v3, 4, v2\nv_and_b32 v4, 15, v2')
    s('s_and_b32 s64, s63, 1\ns_lshr_b32 s65, s63, 1')
    s('v_and_b32 v5, 15, v0\nv_lshlrev_b32 v5, 1, v5\nv_lshrrev_b32 v6, 4, v0\nv_lshlrev_b32 v6, 1, v6')
    s('s_mul_i32 s66, s59, 224\ns_mul_i32 s67, s65, 112\ns_add_u32 s66, s66, s67')
    s('s_mul_i32 s67, s64, 48\ns_add_u32 s67, s66, s67')
    s(f'v_mul_u32_u24 v7, {QROW}, v3')
    s(f's_mul_i32 s68, s64, {8*QROW}')
    s('s_lshl_b32 s69, s67, 2\ns_add_u32 s70, s69, s68')
    s('v_mad_u32_u24 v33, v4, 12, v7')
    s('v_add_u32 v32, s70, v33')
    s(f's_sub_u32 s70, {8*QROW}, s68\ns_add_u32 s70, s70, s69')
    s('v_add_u32 v33, s70, v33')
    s('s_add_u32 s70, s66, 96\ns_lshl_b32 s70, s70, 2\ns_add_u32 s70, s70, s68')
    s('v_lshl_add_u32 v34, v4, 2, v7\nv_add_u32 v34, s70, v34')
    s('v_lshrrev_b32 v8, 3, v2\nv_and_b32 v9, 7, v2\nv_xor_b32 v9, v9, v3')
    s('s_lshl_b32 s70, s63, 5\nv_add_u32 v8, s70, v8\nv_lshlrev_b32 v8, 11, v8')
    s('v_lshl_add_u32 v36, v9, 4, v8')
    s('v_xor_b32 v37, 64, v36')
    s(f'v_add_u32 v38, {2*(8*2048-1024)}, v36')
    s(f'v_add_u32 v37, {8*2048-1024}, v37')
    s(f'v_add_u32 v39, {2*(8*2048-1024)}, v37')
    s('s_waitcnt lgkmcnt(0)')
    s(f's_mov_b32 s10, {M*K*2}\ns_mov_b32 s11, 0x20000')
    s(f's_mov_b32 s14, {K//8*QROW}\ns_mov_b32 s15, 0x20000')
    s(f's_mov_b32 s28, s20\ns_mov_b32 s29, s21\ns_mov_b32 s30, 32\ns_mov_b32 s31, 0x20000')
    s('buffer_load_ushort v24, v5, s[28:31], 0 offen')
    s('buffer_load_ushort v23, v6, s[28:31], 0 offen')
    s('s_lshl_b32 s56, s58, 18')
    s(f's_lshl_b32 s57, s63, 12\ns_add_u32 s57, s57, {RING}')
    s(f's_xor_b32 s71, s63, 2\ns_lshl_b32 s71, s71, 12\ns_add_u32 s71, s71, {RING + 16384}')
    for j in range(16): s(f's_mov_b32 s{40+j}, {(16*(j//2) + 4*(j%2))*QROW}')
    def pload(it):
        c = CODE(it); o0, o1 = 40 + 2*it, 41 + 2*it
        return [I(f'buffer_load_dwordx3 v[{c}:{c+2}], v32, s[12:15], s{o0} offen'),
                I(f'buffer_load_dwordx3 v[{c+4}:{c+6}], v32, s[12:15], s{o1} offen'),
                I(f'buffer_load_dword v{c+3}, v34, s[12:15], s{o0} offen'),
                I(f'buffer_load_dword v{c+7}, v34, s[12:15], s{o1} offen'),
                I(f'buffer_load_dwordx3 v[{c+8}:{c+10}], v33, s[12:15], s{o0} offen'),
                I(f'buffer_load_dwordx3 v[{c+12}:{c+14}], v33, s[12:15], s{o1} offen')]
    def dma(it):
        out = []
        for half in range(2):
            for j in range(4):
                pre = []
                if j == 0:
                    pre.append(I(f's_add_u32 m0, s{57 if half == 0 else 71}, {slot(it)*32768}'))
                    if it or half: pre.append(I('s_add_u32 s56, s56, 128'))
                out.append((pre, I(f'buffer_load_dwordx4 v{36+j}, s[8:11], s56 offen offset:{j*1024} lds', defs={f'dma{it}'})))
        return out
    def emit_dma(it):
        for pre, d in dma(it):
            for x in pre: s(x)
            s(d)
    for x in pload(0): s(x)
    emit_dma(0)
    if cpf:
        s('s_getpc_b64 s[72:73]\ns_mov_b32 s74, 0x6000\ns_mov_b32 s75, 0x20000\ns_and_b32 s72, s72, 0xffffff00')
        s('v_lshlrev_b32 v10, 7, v0')
        s('buffer_load_dword v11, v10, s[72:75], 0 offen')
    for x in pload(1): s(x)
    emit_dma(1)
    s(f's_mov_b32 s32, s22\ns_mov_b32 s33, s23\ns_mov_b32 s34, {N*2}\ns_mov_b32 s35, 0x20000')
    s('v_mul_u32_u24 v10, 24, v3\ns_lshl_b32 s70, s67, 1\nv_add_u32 v10, s70, v10')
    s('s_add_u32 s70, s66, 96\ns_lshl_b32 s70, s70, 1\nv_lshl_add_u32 v12, v3, 3, s70')
    s('buffer_load_dwordx4 v[48:51], v10, s[32:35], 0 offen\nbuffer_load_dwordx2 v[52:53], v10, s[32:35], 0 offen offset:16')
    s('buffer_load_dwordx2 v[54:55], v12, s[32:35], 0 offen')
    for x in pload(2): s(x)
    emit_dma(2)
    s(f's_mov_b32 s18, {M*N*2}\ns_mov_b32 s19, 0x20000')
    for b in range(4): s(f's_mov_b32 s{36+b}, {0x0c0c0000 | ((4+b) << 8)}')
    s('v_and_b32 v35, 31, v2\nv_lshlrev_b32 v35, 2, v35')
    s('v_lshrrev_b32 v8, 1, v4\nv_xor_b32 v8, v8, v3\nv_lshlrev_b32 v8, 4, v8\nv_lshl_add_u32 v8, v4, 7, v8')
    s(f's_lshl_b32 s70, s64, 14\ns_add_u32 s72, s70, {RING}\ns_sub_u32 s73, {RING + 16384}, s70')
    s('v_add_u32 v40, s72, v8\nv_add_u32 v42, s73, v8\nv_xor_b32 v41, 64, v40\nv_xor_b32 v43, 64, v42')
    for k in range(4): s(f'v_add_u32 v{44+k}, 65536, v{40+k}')
    s(f'v_mul_u32_u24 v8, {RS}, v4')
    s(f's_mul_i32 s70, s64, {64*RS}\ns_mul_i32 s72, s65, 224\ns_add_u32 s72, s72, {RING}')
    s('s_mul_i32 s73, s64, 96\ns_add_u32 s73, s73, s72')
    s('v_mad_u32_u24 v9, v3, 24, v8')
    s('s_add_u32 s74, s73, s70\nv_add_u32 v26, s74, v9')
    s(f's_sub_u32 s74, {64*RS}, s70\ns_add_u32 s74, s74, s73\nv_add_u32 v27, s74, v9')
    s('s_add_u32 s74, s72, s70\ns_add_u32 s74, s74, 192\nv_lshl_add_u32 v28, v3, 3, v8\nv_add_u32 v28, s74, v28')
    s(f's_mov_b32 s72, {(2**32 + 27)//28}')
    s(f's_mul_i32 s73, s63, {16*RS}\ns_add_u32 s73, s73, {RING}')
    s(f's_lshl_b32 s74, s58, 7\ns_lshl_b32 s75, s63, 4\ns_add_u32 s74, s74, s75\ns_mul_i32 s74, s74, {N*2}\ns_mul_i32 s75, s59, 448\ns_add_u32 s74, s74, s75')
    for j in range(7):
        s(f'v_add_u32 v29, {64*j}, v2')
        s('v_mul_hi_u32 v30, v29, s72')
        s('v_lshlrev_b32 v29, 4, v29')
        s(f'v_mad_u32_u24 v31, v30, 16, v29')
        s(f'v_add_u32 v{8+j}, s73, v31')
        s(f'v_mul_u32_u24 v30, {N*2 - 448}, v30')
        s(f'v_add3_u32 v{16+j}, v30, v29, s74')
    assert RS - 448 == 16
    EXB = RING + 2*32768
    s(f's_lshl_b32 s70, s63, 12\ns_add_u32 s70, s70, {EXB}\nv_lshl_add_u32 v29, v2, 4, s70\nv_xor_b32 v30, 4096, v29')
    s('v_and_b32 v25, 7, v0\nv_lshlrev_b32 v25, 4, v25\nv_lshl_add_u32 v25, v0, 8, v25')
    for r in range(56, 60): s(f'v_lshl_or_b32 v{r}, v23, 16, v24')
    for j in range(8):
        if j: s(f'v_xor_b32 v{60 + j%2}, {16*j}, v25')
        s(f'ds_write_b128 v{60 + j%2 if j else 25}, v[56:59]', defs={'tbl'})
    s('s_barrier', uses={'tbl', 'dma0'})
    def stamp(k):
        if stamps: s(f's_waitcnt lgkmcnt(0)\ns_memtime s[76:77]\ns_waitcnt lgkmcnt(0)\ns_sub_u32 s{96+k}, s76, s82')
    stamp(0)
    NG = 56 * 16
    gaps = {}
    def put(g, cls, ins): gaps.setdefault(g, {'s': [], 'v': []})[cls].append(ins)
    lk = []
    for gam in range(56):
        it, G = divmod(gam, 7)
        for j in range(8):
            st, q = divmod(j, 4)
            creg = CODE(it) + (4*st + G if G < 4 else 8 + 4*st + (G - 4))
            n = len(lk)
            lk.append((16*gam - 24 + 2*j, I(f'v_perm_b32 v{56 + n%8}, v{creg}, v35, s{36+q}'), I(f'ds_read_b32 a{WF(G, st)+q}, v{56 + n%8}')))
    for g, v, d in lk: put(g, 'v', d)
    for g, v, d in lk: put(g - 2, 'v', v)
    def qread(it, b, k):
        i, st = divmod(k, 2)
        sl = slot(it)
        base = 40 + (4 if sl == 2 else 0) + 2*b + st
        off = (0 if sl == 2 else sl*32768) + ((i ^ 4) if b else i) * 2048
        return I(f'ds_read_b128 a[{XF(b,i,st)}:{XF(b,i,st)+3}], v{base} offset:{off}', defs={f'q{it}'})
    qslot = lambda k: 1 + 2*(3*(k//2) + k%2)
    oslot = lambda k: 1 + 2*(3*k + 2)
    for it in range(8):
        g0 = 112*it
        for k in range(16):
            put(g0 - 48 + qslot(k), 'v', qread(it, 0, k))
            put(g0 + qslot(k), 'v', qread(it, 1, k))
        if it + 3 < 8:
            for k, x in enumerate(pload(it + 3)): put(g0 + oslot(k), 'v', x)
            for k, (pre, d) in enumerate(dma(it + 3)):
                g = g0 + 64 + oslot(k)
                for n, x in enumerate(pre): put(g - 2 - 2*n, 's', x)
                put(g, 'v', d)
        if it < 7: put(g0 + 63, 's', I('s_barrier', uses={f'q{it}', f'dma{it+1}'}))
    for g in sorted(x for x in gaps if x < 0):
        for x in gaps[g]['s'] + gaps[g]['v']: s(x)
    for g in range(NG):
        gam, k = divmod(g, 16); it, G = divmod(gam, 7); i, st = divmod(k, 2)
        b, t = (0, G) if G < 4 else (1, G - 4)
        c = ACC(t, i)
        src = '0' if (it == 0 and b == 0 and st == 0) else f'v[{c}:{c+3}]'
        s(f'v_mfma_f32_16x16x32_bf16 v[{c}:{c+3}], a[{WF(G,st)}:{WF(G,st)+3}], a[{XF(b,i,st)}:{XF(b,i,st)+3}], {src}')
        if g in gaps:
            for x in gaps[g]['s'] + gaps[g]['v']: s(x)
    stamp(1)
    s('s_barrier', uses={'q7'})
    for i in range(4):
        c = ACC(3, 4+i)
        s(f'ds_write_b128 v29, v[{c}:{c+3}] offset:{i*1024}', defs={'ex'})
    for t in range(3):
        for r in range(4):
            j = 3*r + t
            s(f'v_lshlrev_b32 v{64+4*t+r}, 16, v{48+j//2}' if j % 2 == 0 else f'v_and_b32 v{64+4*t+r}, 0xffff0000, v{48+j//2}')
    for r in range(4):
        s(f'v_lshlrev_b32 v{76+r}, 16, v{54+r//2}' if r % 2 == 0 else f'v_and_b32 v{76+r}, 0xffff0000, v{54+r//2}')
    s('s_barrier', uses={'ex'})
    for i in range(4): s(f'ds_read_b128 v[{80+4*i}:{83+4*i}], v30 offset:{i*1024}')
    for i in range(8):
        for t in range(3):
            for r in (0, 2):
                c = ACC(t, i) + r
                s(f'v_pk_mul_f32 v[{c}:{c+1}], v[{c}:{c+1}], v[{64+4*t+r}:{65+4*t+r}]')
        o = 96 + (i % 2) * 6
        for u in range(6):
            j0, j1 = 2*u, 2*u + 1
            s(f'v_cvt_pk_bf16_f32 v{o+u}, v{ACC(j0%3, i) + j0//3}, v{ACC(j1%3, i) + j1//3}')
        for u in range(3):
            s(f'ds_write_b64 v{26 if i < 4 else 27}, v[{o+2*u}:{o+2*u+1}] offset:{(i%4)*16*RS + 8*u}', defs={'stg'})
    for i in range(4):
        c = ACC(3, i)
        for r in (0, 2):
            s(f'v_pk_add_f32 v[{c+r}:{c+r+1}], v[{c+r}:{c+r+1}], v[{80+4*i+r}:{81+4*i+r}]')
        for r in (0, 2):
            s(f'v_pk_mul_f32 v[{c+r}:{c+r+1}], v[{c+r}:{c+r+1}], v[{76+r}:{77+r}]')
        s(f'v_cvt_pk_bf16_f32 v{108+2*i}, v{c}, v{c+1}\nv_cvt_pk_bf16_f32 v{109+2*i}, v{c+2}, v{c+3}')
        s(f'ds_write_b64 v28, v[{108+2*i}:{109+2*i}] offset:{i*16*RS}', defs={'stg'})
    s(f's_mov_b32 s70, {64*N*2}')
    s('s_barrier', uses={'stg'})
    stamp(2)
    for hf in range(2):
        for j in range(7):
            r = 128 + (hf*7 + j)*4
            s(f'ds_read_b128 v[{r}:{r+3}], v{8+j} offset:{hf*64*RS}')
    for hf in range(2):
        for j in range(7):
            r = 128 + (hf*7 + j)*4
            s(f'buffer_store_dwordx4 v[{r}:{r+3}], v{16+j}, s[16:19], {"s70" if hf else "0"} offen {aux_out}')
    stamp(3)
    body = render(s.finish())
    if stamps:
        a = Asm()
        a('s_waitcnt vmcnt(0)')
        a('s_mov_b32 s79, 0')
        stamp_end(a, 80, 84, 2, 24, nst=8, extra=[(96+k, 79) for k in range(4)])
        body += a.text()
    body += 'L_end:\n    s_endpgm\n'
    return body

def build(stamps=False, **kw):
    pk = {k[2:]: v for k, v in kw.items() if k.startswith('p_')}
    gk = {k: v for k, v in kw.items() if not k.startswith('p_')}
    return multi([dict(name='af4_pack_kernel', body=pack_kernel(**pk), grid=448, block=256, lds=0, vgpr=40, accum=40, sgpr=32),
                  dict(name='af4_gemm_kernel', body=gemm_kernel(stamps=stamps, **gk), grid=256, block=256, lds=163840, vgpr=440, accum=256, sgpr=102)])
if __name__ == '__main__':
    open('v1.s', 'w').write(build())
    open('v1_st.s', 'w').write(build(stamps=True))
```

```python
import sys
sys.path.insert(0, 'tools')
from asmlib import *
DOFF = 200 << 20
BASE_TICKS = 6000
MULT = 8
def rstamp_text(k, wg=0, sbase=84, v=(62, 63), lbl=''):
    t = sbase
    return f"""s_waitcnt lgkmcnt(0)
s_load_dwordx2 s[{t}:{t+1}], s[0:1], 48
s_memrealtime s[{t+4}:{t+5}]
s_lshl_b32 s{t+2}, s2, 6
s_waitcnt lgkmcnt(0)
s_add_u32 s{t}, s{t}, {DOFF}
s_addc_u32 s{t+1}, s{t+1}, 0
v_mov_b32 v{v[0]}, s{t+4}
v_mov_b32 v{v[1]}, s{t+2}
global_store_dword v{v[1]}, v{v[0]}, s[{t}:{t+1}] offset:{4*k} sc1"""
def waiter(a_idx, b_idx):
    a = Asm()
    a('s_cmp_ge_u32 s2, 1\ns_cbranch_scc1 L_w_end')
    a('s_memrealtime s[20:21]')
    a('s_load_dwordx2 s[4:5], s[0:1], 48\ns_waitcnt lgkmcnt(0)')
    a(f's_add_u32 s4, s4, {DOFF}\ns_addc_u32 s5, s5, 0')
    a('v_mov_b32 v1, 0')
    a('global_load_dword v2, v1, s[4:5] sc1')
    a(f'global_load_dword v3, v1, s[4:5] offset:{4*a_idx} sc1')
    a(f'global_load_dword v4, v1, s[4:5] offset:{4*max(b_idx,0)} sc1')
    a('s_waitcnt vmcnt(0)')
    a('v_readfirstlane_b32 s8, v2\nv_readfirstlane_b32 s9, v3\nv_readfirstlane_b32 s10, v4')
    a('s_nop 3')
    if b_idx < 0: a('s_mov_b32 s10, s20')
    a('s_sub_u32 s10, s10, s9')
    a(f's_min_u32 s10, s10, 5000')
    a(f's_mul_i32 s10, s10, {MULT}\ns_add_u32 s10, s10, {BASE_TICKS}')
    a('s_mov_b32 s11, 0')
    a('L_w_loop:')
    a('s_memrealtime s[12:13]\ns_waitcnt lgkmcnt(0)')
    a('s_sub_u32 s12, s12, s8')
    a('s_add_u32 s11, s11, 1')
    a('s_cmp_ge_u32 s11, 20000\ns_cbranch_scc1 L_w_end')
    a('s_cmp_lt_u32 s12, s10\ns_cbranch_scc1 L_w_loop')
    a('L_w_end:\ns_endpgm')
    return dict(name='af4_wait_kernel', body=a.text(), grid=1, block=64, lds=0, vgpr=8, accum=8, sgpr=32)
```

```python
import sys
sys.path.insert(0, 'tools')
from asmlib import *
from sched import *
from diag import rstamp_text

M, K, N = 2048, 1024, 3584
QROW = N * 4
RS = 464
RING = 65536

def pack_kernel(xpf=True, aux_st='', aux_ld='', rs=False):
    s = Stream()
    s('s_cmp_ge_u32 s2, 448\ns_cbranch_scc1 L_pack_end')
    if rs: s(rstamp_text(0, sbase=24, v=(6, 7), lbl='p'))
    s('s_load_dwordx4 s[4:7], s[0:1], 0\ns_load_dwordx2 s[12:13], s[0:1], 48')
    s('v_lshrrev_b32 v1, 6, v0')
    s('v_and_b32 v2, 63, v0')
    s('v_readfirstlane_b32 s3, v1')
    s('v_lshlrev_b32 v3, 4, v2')
    s('s_lshl_b32 s16, s2, 2\ns_add_u32 s16, s16, s3')
    s(f's_mul_hi_u32 s17, s16, {(2**32 + 13)//14}')
    s('s_mul_i32 s18, s17, 14\ns_sub_u32 s18, s16, s18')
    s('s_lshl_b32 s18, s18, 10')
    s(f's_mul_i32 s19, s17, {8*QROW}\ns_add_u32 s19, s19, s18')
    s(f's_mul_i32 s20, s17, {QROW}\ns_add_u32 s20, s20, s18')
    s('s_waitcnt lgkmcnt(0)')
    s(f's_mov_b32 s8, s6\ns_mov_b32 s9, s7\ns_mov_b32 s10, {K*QROW}\ns_mov_b32 s11, 0x20000')
    s(f's_mov_b32 s14, {K//8*QROW}\ns_mov_b32 s15, 0x20000')
    for e in range(8):
        s(f'buffer_load_dwordx4 v[{8+4*e}:{11+4*e}], v3, s[8:11], s19 offen {aux_ld}')
        if e < 7: s(f's_add_u32 s19, s19, {QROW}')
    if xpf:
        s(f's_mov_b32 s6, {M*K*2}\ns_mov_b32 s7, 0x20000')
        s('s_lshl_b32 s21, s16, 13')
        s('v_lshlrev_b32 v4, 7, v2')
        s('buffer_load_dword v5, v4, s[4:7], s21 offen')
    for e in range(1, 8):
        for c in range(4):
            s(f'v_lshl_or_b32 v{8+c}, v{8+4*e+c}, {4*e}, v{8+c}')
    s(f'buffer_store_dwordx4 v[8:11], v3, s[12:15], s20 offen {aux_st}')
    s('L_pack_end:')
    s('s_endpgm')
    return render(s.finish())

def gemm_kernel(stamps=False, aux_out='sc1', xm=4, cpf=False, rs=False):
    s = Stream()
    ACC = lambda t, i: 128 + (t * 8 + i) * 4
    XF = lambda b, i, st: b * 64 + (i * 2 + st) * 4
    WF = lambda G, st: 128 + G * 8 + st * 4
    CODE = lambda it: 64 + (it % 4) * 16
    slot = lambda it: (it + 1) % 3
    s('s_cmp_ge_u32 s2, 256\ns_cbranch_scc1 L_end')
    if rs: s(rstamp_text(1, v=(15, 31)))
    if stamps: s('s_memrealtime s[80:81]\ns_memtime s[82:83]')
    s('s_load_dwordx2 s[8:9], s[0:1], 0\ns_load_dwordx4 s[20:23], s[0:1], 16\ns_load_dwordx2 s[16:17], s[0:1], 32\ns_load_dwordx2 s[12:13], s[0:1], 48')
    lm = {2: 1, 4: 2, 8: 3, 16: 4}[xm]
    gm = 16 // xm
    lgm = 4 - lm
    s('s_and_b32 s60, s2, 7\ns_lshr_b32 s61, s2, 3')
    s(f's_and_b32 s58, s60, {gm-1}\ns_lshl_b32 s58, s58, {lm}\ns_and_b32 s62, s61, {xm-1}\ns_add_u32 s58, s58, s62')
    s(f's_lshr_b32 s59, s60, {lgm}\ns_lshl_b32 s59, s59, {5-lm}\ns_lshr_b32 s62, s61, {lm}\ns_add_u32 s59, s59, s62')
    s('v_lshrrev_b32 v1, 6, v0\nv_and_b32 v2, 63, v0')
    s('v_readfirstlane_b32 s63, v1')
    s('v_lshrrev_b32 v3, 4, v2\nv_and_b32 v4, 15, v2')
    s('s_and_b32 s64, s63, 1\ns_lshr_b32 s65, s63, 1')
    s('v_and_b32 v5, 15, v0\nv_lshlrev_b32 v5, 1, v5\nv_lshrrev_b32 v6, 4, v0\nv_lshlrev_b32 v6, 1, v6')
    s('s_mul_i32 s66, s59, 224\ns_mul_i32 s67, s65, 112\ns_add_u32 s66, s66, s67')
    s('s_mul_i32 s67, s64, 48\ns_add_u32 s67, s66, s67')
    s(f'v_mul_u32_u24 v7, {QROW}, v3')
    s(f's_mul_i32 s68, s64, {8*QROW}')
    s('s_lshl_b32 s69, s67, 2\ns_add_u32 s70, s69, s68')
    s('v_mad_u32_u24 v33, v4, 12, v7')
    s('v_add_u32 v32, s70, v33')
    s(f's_sub_u32 s70, {8*QROW}, s68\ns_add_u32 s70, s70, s69')
    s('v_add_u32 v33, s70, v33')
    s('s_add_u32 s70, s66, 96\ns_lshl_b32 s70, s70, 2\ns_add_u32 s70, s70, s68')
    s('v_lshl_add_u32 v34, v4, 2, v7\nv_add_u32 v34, s70, v34')
    s('v_lshrrev_b32 v8, 3, v2\nv_and_b32 v9, 7, v2\nv_xor_b32 v9, v9, v3')
    s('s_lshl_b32 s70, s63, 5\nv_add_u32 v8, s70, v8\nv_lshlrev_b32 v8, 11, v8')
    s('v_lshl_add_u32 v36, v9, 4, v8')
    s('v_xor_b32 v37, 64, v36')
    s(f'v_add_u32 v38, {2*(8*2048-1024)}, v36')
    s(f'v_add_u32 v37, {8*2048-1024}, v37')
    s(f'v_add_u32 v39, {2*(8*2048-1024)}, v37')
    s('s_waitcnt lgkmcnt(0)')
    s(f's_mov_b32 s10, {M*K*2}\ns_mov_b32 s11, 0x20000')
    s(f's_mov_b32 s14, {K//8*QROW}\ns_mov_b32 s15, 0x20000')
    s(f's_mov_b32 s28, s20\ns_mov_b32 s29, s21\ns_mov_b32 s30, 32\ns_mov_b32 s31, 0x20000')
    s('buffer_load_ushort v24, v5, s[28:31], 0 offen')
    s('buffer_load_ushort v23, v6, s[28:31], 0 offen')
    s('s_lshl_b32 s56, s58, 18')
    s(f's_lshl_b32 s57, s63, 12\ns_add_u32 s57, s57, {RING}')
    s(f's_xor_b32 s71, s63, 2\ns_lshl_b32 s71, s71, 12\ns_add_u32 s71, s71, {RING + 16384}')
    for j in range(16): s(f's_mov_b32 s{40+j}, {(16*(j//2) + 4*(j%2))*QROW}')
    def pload(it):
        c = CODE(it); o0, o1 = 40 + 2*it, 41 + 2*it
        return [I(f'buffer_load_dwordx3 v[{c}:{c+2}], v32, s[12:15], s{o0} offen'),
                I(f'buffer_load_dwordx3 v[{c+4}:{c+6}], v32, s[12:15], s{o1} offen'),
                I(f'buffer_load_dword v{c+3}, v34, s[12:15], s{o0} offen'),
                I(f'buffer_load_dword v{c+7}, v34, s[12:15], s{o1} offen'),
                I(f'buffer_load_dwordx3 v[{c+8}:{c+10}], v33, s[12:15], s{o0} offen'),
                I(f'buffer_load_dwordx3 v[{c+12}:{c+14}], v33, s[12:15], s{o1} offen')]
    def dma(it):
        out = []
        for half in range(2):
            for j in range(4):
                pre = []
                if j == 0:
                    pre.append(I(f's_add_u32 m0, s{57 if half == 0 else 71}, {slot(it)*32768}'))
                    if it or half: pre.append(I('s_add_u32 s56, s56, 128'))
                out.append((pre, I(f'buffer_load_dwordx4 v{36+j}, s[8:11], s56 offen offset:{j*1024} lds', defs={f'dma{it}'})))
        return out
    def emit_dma(it):
        for pre, d in dma(it):
            for x in pre: s(x)
            s(d)
    for x in pload(0): s(x)
    emit_dma(0)
    if cpf:
        s('s_getpc_b64 s[72:73]\ns_mov_b32 s74, 0x6000\ns_mov_b32 s75, 0x20000\ns_and_b32 s72, s72, 0xffffff00')
        s('v_lshlrev_b32 v10, 7, v0')
        s('buffer_load_dword v11, v10, s[72:75], 0 offen')
    for x in pload(1): s(x)
    emit_dma(1)
    s(f's_mov_b32 s32, s22\ns_mov_b32 s33, s23\ns_mov_b32 s34, {N*2}\ns_mov_b32 s35, 0x20000')
    s('v_mul_u32_u24 v10, 24, v3\ns_lshl_b32 s70, s67, 1\nv_add_u32 v10, s70, v10')
    s('s_add_u32 s70, s66, 96\ns_lshl_b32 s70, s70, 1\nv_lshl_add_u32 v12, v3, 3, s70')
    s('buffer_load_dwordx4 v[48:51], v10, s[32:35], 0 offen\nbuffer_load_dwordx2 v[52:53], v10, s[32:35], 0 offen offset:16')
    s('buffer_load_dwordx2 v[54:55], v12, s[32:35], 0 offen')
    for x in pload(2): s(x)
    emit_dma(2)
    s(f's_mov_b32 s18, {M*N*2}\ns_mov_b32 s19, 0x20000')
    for b in range(4): s(f's_mov_b32 s{36+b}, {0x0c0c0000 | ((4+b) << 8)}')
    s('v_and_b32 v35, 31, v2\nv_lshlrev_b32 v35, 2, v35')
    s('v_lshrrev_b32 v8, 1, v4\nv_xor_b32 v8, v8, v3\nv_lshlrev_b32 v8, 4, v8\nv_lshl_add_u32 v8, v4, 7, v8')
    s(f's_lshl_b32 s70, s64, 14\ns_add_u32 s72, s70, {RING}\ns_sub_u32 s73, {RING + 16384}, s70')
    s('v_add_u32 v40, s72, v8\nv_add_u32 v42, s73, v8\nv_xor_b32 v41, 64, v40\nv_xor_b32 v43, 64, v42')
    for k in range(4): s(f'v_add_u32 v{44+k}, 65536, v{40+k}')
    s(f'v_mul_u32_u24 v8, {RS}, v4')
    s(f's_mul_i32 s70, s64, {64*RS}\ns_mul_i32 s72, s65, 224\ns_add_u32 s72, s72, {RING}')
    s('s_mul_i32 s73, s64, 96\ns_add_u32 s73, s73, s72')
    s('v_mad_u32_u24 v9, v3, 24, v8')
    s('s_add_u32 s74, s73, s70\nv_add_u32 v26, s74, v9')
    s(f's_sub_u32 s74, {64*RS}, s70\ns_add_u32 s74, s74, s73\nv_add_u32 v27, s74, v9')
    s('s_add_u32 s74, s72, s70\ns_add_u32 s74, s74, 192\nv_lshl_add_u32 v28, v3, 3, v8\nv_add_u32 v28, s74, v28')
    s(f's_mov_b32 s72, {(2**32 + 27)//28}')
    s(f's_mul_i32 s73, s63, {16*RS}\ns_add_u32 s73, s73, {RING}')
    s(f's_lshl_b32 s74, s58, 7\ns_lshl_b32 s75, s63, 4\ns_add_u32 s74, s74, s75\ns_mul_i32 s74, s74, {N*2}\ns_mul_i32 s75, s59, 448\ns_add_u32 s74, s74, s75')
    for j in range(7):
        s(f'v_add_u32 v29, {64*j}, v2')
        s('v_mul_hi_u32 v30, v29, s72')
        s('v_lshlrev_b32 v29, 4, v29')
        s(f'v_mad_u32_u24 v31, v30, 16, v29')
        s(f'v_add_u32 v{8+j}, s73, v31')
        s(f'v_mul_u32_u24 v30, {N*2 - 448}, v30')
        s(f'v_add3_u32 v{16+j}, v30, v29, s74')
    assert RS - 448 == 16
    EXB = RING + 2*32768
    s(f's_lshl_b32 s70, s63, 12\ns_add_u32 s70, s70, {EXB}\nv_lshl_add_u32 v29, v2, 4, s70\nv_xor_b32 v30, 4096, v29')
    s('v_and_b32 v25, 7, v0\nv_lshlrev_b32 v25, 4, v25\nv_lshl_add_u32 v25, v0, 8, v25')
    for r in range(56, 60): s(f'v_lshl_or_b32 v{r}, v23, 16, v24')
    for j in range(8):
        if j: s(f'v_xor_b32 v{60 + j%2}, {16*j}, v25')
        s(f'ds_write_b128 v{60 + j%2 if j else 25}, v[56:59]', defs={'tbl'})
    s('s_barrier', uses={'tbl', 'dma0'})
    def stamp(k):
        if rs: s(rstamp_text(2 + k, v=(15, 31)))
        if stamps: s(f's_waitcnt lgkmcnt(0)\ns_memtime s[76:77]\ns_waitcnt lgkmcnt(0)\ns_sub_u32 s{96+k}, s76, s82')
    stamp(0)
    NG = 56 * 16
    gaps = {}
    def put(g, cls, ins): gaps.setdefault(g, {'s': [], 'v': []})[cls].append(ins)
    lk = []
    for gam in range(56):
        it, G = divmod(gam, 7)
        for j in range(8):
            st, q = divmod(j, 4)
            creg = CODE(it) + (4*st + G if G < 4 else 8 + 4*st + (G - 4))
            n = len(lk)
            lk.append((16*gam - 24 + 2*j, I(f'v_perm_b32 v{56 + n%8}, v{creg}, v35, s{36+q}'), I(f'ds_read_b32 a{WF(G, st)+q}, v{56 + n%8}')))
    for g, v, d in lk: put(g, 'v', d)
    for g, v, d in lk: put(g - 2, 'v', v)
    def qread(it, b, k):
        i, st = divmod(k, 2)
        sl = slot(it)
        base = 40 + (4 if sl == 2 else 0) + 2*b + st
        off = (0 if sl == 2 else sl*32768) + ((i ^ 4) if b else i) * 2048
        return I(f'ds_read_b128 a[{XF(b,i,st)}:{XF(b,i,st)+3}], v{base} offset:{off}', defs={f'q{it}'})
    qslot = lambda k: 1 + 2*(3*(k//2) + k%2)
    oslot = lambda k: 1 + 2*(3*k + 2)
    for it in range(8):
        g0 = 112*it
        for k in range(16):
            put(g0 - 48 + qslot(k), 'v', qread(it, 0, k))
            put(g0 + qslot(k), 'v', qread(it, 1, k))
        if it + 3 < 8:
            for k, x in enumerate(pload(it + 3)): put(g0 + oslot(k), 'v', x)
            for k, (pre, d) in enumerate(dma(it + 3)):
                g = g0 + 64 + oslot(k)
                for n, x in enumerate(pre): put(g - 2 - 2*n, 's', x)
                put(g, 'v', d)
        if it < 7: put(g0 + 63, 's', I('s_barrier', uses={f'q{it}', f'dma{it+1}'}))
    for g in sorted(x for x in gaps if x < 0):
        for x in gaps[g]['s'] + gaps[g]['v']: s(x)
    for g in range(NG):
        gam, k = divmod(g, 16); it, G = divmod(gam, 7); i, st = divmod(k, 2)
        b, t = (0, G) if G < 4 else (1, G - 4)
        c = ACC(t, i)
        src = '0' if (it == 0 and b == 0 and st == 0) else f'v[{c}:{c+3}]'
        s(f'v_mfma_f32_16x16x32_bf16 v[{c}:{c+3}], a[{WF(G,st)}:{WF(G,st)+3}], a[{XF(b,i,st)}:{XF(b,i,st)+3}], {src}')
        if g in gaps:
            for x in gaps[g]['s'] + gaps[g]['v']: s(x)
    stamp(1)
    s('s_barrier', uses={'q7'})
    for i in range(4):
        c = ACC(3, 4+i)
        s(f'ds_write_b128 v29, v[{c}:{c+3}] offset:{i*1024}', defs={'ex'})
    for t in range(3):
        for r in range(4):
            j = 3*r + t
            s(f'v_lshlrev_b32 v{64+4*t+r}, 16, v{48+j//2}' if j % 2 == 0 else f'v_and_b32 v{64+4*t+r}, 0xffff0000, v{48+j//2}')
    for r in range(4):
        s(f'v_lshlrev_b32 v{76+r}, 16, v{54+r//2}' if r % 2 == 0 else f'v_and_b32 v{76+r}, 0xffff0000, v{54+r//2}')
    s('s_barrier', uses={'ex'})
    for i in range(4): s(f'ds_read_b128 v[{80+4*i}:{83+4*i}], v30 offset:{i*1024}')
    for i in range(8):
        for t in range(3):
            for r in (0, 2):
                c = ACC(t, i) + r
                s(f'v_pk_mul_f32 v[{c}:{c+1}], v[{c}:{c+1}], v[{64+4*t+r}:{65+4*t+r}]')
        o = 96 + (i % 2) * 6
        for u in range(6):
            j0, j1 = 2*u, 2*u + 1
            s(f'v_cvt_pk_bf16_f32 v{o+u}, v{ACC(j0%3, i) + j0//3}, v{ACC(j1%3, i) + j1//3}')
        for u in range(3):
            s(f'ds_write_b64 v{26 if i < 4 else 27}, v[{o+2*u}:{o+2*u+1}] offset:{(i%4)*16*RS + 8*u}', defs={'stg'})
    for i in range(4):
        c = ACC(3, i)
        for r in (0, 2):
            s(f'v_pk_add_f32 v[{c+r}:{c+r+1}], v[{c+r}:{c+r+1}], v[{80+4*i+r}:{81+4*i+r}]')
        for r in (0, 2):
            s(f'v_pk_mul_f32 v[{c+r}:{c+r+1}], v[{c+r}:{c+r+1}], v[{76+r}:{77+r}]')
        s(f'v_cvt_pk_bf16_f32 v{108+2*i}, v{c}, v{c+1}\nv_cvt_pk_bf16_f32 v{109+2*i}, v{c+2}, v{c+3}')
        s(f'ds_write_b64 v28, v[{108+2*i}:{109+2*i}] offset:{i*16*RS}', defs={'stg'})
    s(f's_mov_b32 s70, {64*N*2}')
    s('s_barrier', uses={'stg'})
    stamp(2)
    for hf in range(2):
        for j in range(7):
            r = 128 + (hf*7 + j)*4
            s(f'ds_read_b128 v[{r}:{r+3}], v{8+j} offset:{hf*64*RS}')
    for hf in range(2):
        for j in range(7):
            r = 128 + (hf*7 + j)*4
            s(f'buffer_store_dwordx4 v[{r}:{r+3}], v{16+j}, s[16:19], {"s70" if hf else "0"} offen {aux_out}')
    stamp(3)
    body = render(s.finish())
    if stamps:
        a = Asm()
        a('s_waitcnt vmcnt(0)')
        a('s_mov_b32 s79, 0')
        stamp_end(a, 80, 84, 2, 24, nst=8, extra=[(96+k, 79) for k in range(4)])
        body += a.text()
    body += 'L_end:\n    s_endpgm\n'
    return body

def build(stamps=False, **kw):
    pk = {k[2:]: v for k, v in kw.items() if k.startswith('p_')}
    gk = {k: v for k, v in kw.items() if not k.startswith('p_')}
    return multi([dict(name='af4_pack_kernel', body=pack_kernel(**pk), grid=448, block=256, lds=0, vgpr=40, accum=40, sgpr=32),
                  dict(name='af4_gemm_kernel', body=gemm_kernel(stamps=stamps, **gk), grid=256, block=256, lds=163840, vgpr=440, accum=256, sgpr=102)])
if __name__ == '__main__':
    open('v1.s', 'w').write(build())
    open('v1_st.s', 'w').write(build(stamps=True))
```

```python
import re
REG = re.compile(r'\b([vas])(\d+)\b|\b([vas])\[(\d+):(\d+)\]|\b(vcc|exec|m0|scc)\b')
def regs_of(tok):
    out = []
    for m in REG.finditer(tok):
        if m.group(1): out.append(m.group(1) + m.group(2))
        elif m.group(3): out += [m.group(3) + str(i) for i in range(int(m.group(4)), int(m.group(5)) + 1)]
        else: out.append(m.group(6))
    return out
class I:
    def __init__(self, text, defs=(), uses=(), nohoist=False):
        self.text = text.strip()
        self.nohoist = nohoist
        t = self.text.split(';')[0].strip()
        self.label = t.endswith(':') or t.startswith('.')
        op, _, rest = t.partition(' ')
        self.op = op
        ops = [o.strip() for o in rest.split(',')] if rest else []
        r = [regs_of(o) for o in ops]
        flat = lambda l: set(x for y in l for x in y)
        self.w = set(); self.r = set(); self.kind = 'S'; self.srcc = set(); self.stdata = set()
        if self.label: self.kind = 'L'
        elif op.startswith('v_mfma'):
            self.kind = 'M'; self.w = set(r[0]); self.r = flat(r[1:]); self.srcc = set(r[3])
        elif op.startswith('ds_'):
            self.kind = 'D'
            if op.startswith('ds_write') or op.startswith('ds_add'): self.r = flat(r)
            else: self.w = set(r[0]); self.r = flat(r[1:])
        elif op.startswith('buffer_') or op.startswith('global_'):
            self.kind = 'G'
            if op in ('buffer_inv', 'buffer_wbl2'): pass
            elif re.search(r'\blds\b', t): self.r = flat(r) | {'m0'}
            elif 'store' in op or 'atomic' in op:
                self.r = flat(r)
                di = 0 if op.startswith('buffer_') else 1
                if op.endswith('x4') or op.endswith('x3'): self.stdata = set(r[di])
                if 'atomic' in op and 'sc0' in t: self.w = set(r[0])
            else:
                self.w = set(r[0]); self.r = flat(r[1:])
                if 'd16' in op: self.r |= self.w
        elif op.startswith('v_'):
            self.kind = 'V'
            self.w = set(r[0]); self.r = flat(r[1:])
            if op.startswith('v_permlane') or op.startswith('v_swap'): self.w = flat(r); self.r = flat(r)
            if op.startswith('v_fmac') or op.startswith('v_writelane'): self.r |= self.w
            if '_co_' in op: self.w |= set(r[1])
        elif op.startswith('s_'):
            if op.startswith('s_cmp') or op.startswith('s_bitcmp'): self.r = flat(r); self.w = {'scc'}
            elif op in ('s_waitcnt', 's_nop', 's_barrier', 's_endpgm', 's_sleep', 's_setprio') or op.startswith('s_cbranch') or op == 's_branch': pass
            else:
                self.w = set(r[0]); self.r = flat(r[1:])
                if op.startswith('s_load') or op.startswith('s_mem') or op.startswith('s_buffer_load'): self.kind = 'K'
        self.defs = set(defs) | (self.w if self.kind in 'DG' else set())
        self.uses = set(uses) | self.r | self.w
    def __repr__(self): return self.text

def insert_waits(st, age_l=9, age_v=None):
    waits = {}
    mcount = [0] * (len(st) + 1)
    for p, ins in enumerate(st): mcount[p + 1] = mcount[p] + (ins.kind == 'M')
    def fillers(b):
        n = 0; k = b + 1
        while k < len(st) and st[k].kind != 'M': n += st[k].kind != 'L'; k += 1
        return n
    for cls, key, mx, age in (('D', 'lgkm', 15, age_l), ('G', 'vm', 63, age_v)):
        issued = []
        retired = 0
        for p, ins in enumerate(st):
            if ins.op == 's_waitcnt':
                m = re.search(key + r'cnt\((\d+)\)', ins.text)
                if m: retired = max(retired, len(issued) - int(m.group(1)))
            need = -1
            for j in range(len(issued) - 1, retired - 1, -1):
                if st[issued[j]].defs & ins.uses: need = j; break
            if need >= 0:
                q = p
                if not ins.nohoist:
                    cands = []
                    b = p - 1
                    while b >= 0 and b > issued[need] and len(cands) < 3 and p - b <= 14 and st[b].kind != 'L':
                        if st[b].kind == 'M':
                            if not cands and p - b > 5: break
                            if cands and mcount[b] - mcount[issued[need]] < 7: break
                            cands.append(b)
                        b -= 1
                    if cands:
                        q = cands[0] + 1
                        for c in cands:
                            if (c + 1) in waits or fillers(c) < 3: q = c + 1; break
                n = sum(1 for x in issued[need + 1:] if x < q)
                if age is not None:
                    n = min(n, sum(1 for x in issued[need + 1:] if x < q and mcount[q] - mcount[x] < age))
                n = min(n, mx)
                d = waits.setdefault(q, {})
                d[key] = min(d.get(key, 99), n)
                cnt_q = sum(1 for x in issued if x < q)
                retired = max(retired, cnt_q - n)
            if ins.kind == cls: issued.append(p)
    out = []
    for p, ins in enumerate(st):
        if p in waits:
            d = waits[p]
            out.append(I('s_waitcnt ' + ' '.join(f'{k}cnt({v})' for k, v in sorted(d.items(), reverse=True))))
        out.append(ins)
    return out

def verify_waits(st):
    for cls, key in (('D', 'lgkm'), ('G', 'vm')):
        pend = []
        for ins in st:
            if ins.op == 's_waitcnt':
                m = re.search(key + r'cnt\((\d+)\)', ins.text)
                if m:
                    n = int(m.group(1)); pend = pend[len(pend) - n:] if n < len(pend) and n > 0 else ([] if n == 0 else pend)
            for pr in pend:
                assert not (pr.defs & ins.uses), f'uncovered: {pr.text} -> {ins.text}'
            if ins.kind == cls: pend.append(ins)

def states(ins):
    if ins.kind == 'L': return 0
    if ins.op == 's_nop': return int(ins.text.split()[1], 0) + 1
    return 1
def check_hazards(st, fix=False):
    out = []
    probs = []
    for ins in st:
        need = 0; why = ''
        dist = 0; nm = 0
        for pv in reversed(out):
            if dist >= 20: break
            req = 0
            vs = lambda s: set(x for x in s if x[0] in 'va' and x != 'vcc')
            ss = lambda s: set(x for x in s if x[0] == 's' and x != 'scc' or x == 'vcc')
            if pv.kind == 'V' and ins.kind == 'M' and vs(pv.w) & ins.r: req = 2
            if pv.kind == 'V' and pv.op.startswith('v_dot') and vs(pv.w) & (ins.r | ins.w): req = max(req, 3)
            if pv.kind == 'M':
                npass = 4 if '16x16x32' in pv.op else 8
                t = {4: (6, 8, 8, 3), 8: (10, 12, 12, 7)}[npass]
                if ins.kind == 'M':
                    if pv.w & (ins.r - ins.srcc): req = max(req, t[1])
                    elif pv.w & ins.srcc and pv.w != ins.srcc: req = max(req, t[0])
                    elif pv.w & ins.w and pv.w != ins.srcc: req = max(req, t[0])
                elif ins.kind in 'VDG' and pv.w & (ins.r | ins.w): req = max(req, t[2])
                if ins.kind == 'V' and pv.srcc & ins.w: req = max(req, t[3])
            if pv.kind == 'S' and 'm0' in pv.w and ins.kind == 'G' and 'm0' in ins.r: req = max(req, 1)
            if pv.stdata and pv.stdata & ins.w: req = max(req, 2)
            if pv.kind == 'V' and ss(pv.w):
                if ins.kind == 'G' and ss(pv.w) & ins.r: req = max(req, 5)
                if ins.kind == 'V' and ss(pv.w) & ins.r: req = max(req, 4 if 'lane' in ins.op else 2)
            if pv.kind == 'V' and ins.op in ('v_readfirstlane_b32', 'v_readlane_b32') and vs(pv.w) & ins.r: req = max(req, 1)
            if pv.kind == 'V' and ins.op.startswith('v_permlane') and vs(pv.w) & ins.r: req = max(req, 2)
            if pv.kind == 'V' and ins.kind == 'V' and ('dpp' in ins.text or 'row_' in ins.text or 'quad_perm' in ins.text) and vs(pv.w) & ins.r: req = max(req, 2)
            if pv.kind == 'V' and ins.kind == 'V' and ('sdwa' in pv.op or 'op_sel' in pv.text) and vs(pv.w) & (ins.r | ins.w): req = max(req, 1)
            d = dist + (nm if pv.kind == 'M' else 0)
            if req - d > need: need = req - d; why = f'{pv.text} -> {ins.text} req {req} dist {d}'
            dist += states(pv); nm += pv.kind == 'M'
        if need > 0:
            probs.append(why)
            if fix: out.append(I(f's_nop {need - 1}'))
        out.append(ins)
    return out, probs

class Stream:
    def __init__(self): self.l = []
    def __call__(self, s, **kw):
        if isinstance(s, I): self.l.append(s); return
        for x in s.split('\n'):
            if x.strip(): self.l.append(I(x, **kw))
    def finish(self, verbose=True, **kw):
        st = insert_waits(self.l, **kw)
        verify_waits(st)
        st, probs = check_hazards(st, fix=True)
        if verbose:
            for p in probs: print('  nop:', p)
        return st
def render(st):
    return '\n'.join(i.text if i.kind == 'L' else '    ' + i.text for i in st) + '\n'

class Gaps:
    def __init__(self, n):
        self.n = n; self.g = {}
    def at(self, g): return self.g.setdefault(g, {'s': [], 'v': []})
    def ok(self, g, k):
        v = [x[0] for x in self.at(g)['v']]
        if len(v) >= 2: return False
        if not v: return True
        o = v[0]
        if k == 'V' or o == 'V': return True
        if k in 'GW' or o in 'GW': return False
        if k == 'Q' and o == 'Q': return False
        return True
    def put(self, g, k, item, back=False, lo=None):
        if k == 'S':
            while len(self.at(g)['s']) >= 1 and 0 <= g < self.n: g += -1 if back else 1
            self.at(g)['s'].append((k, item)); return g
        while not self.ok(g, k):
            g += -1 if back else 1
            assert lo is None or g >= lo, 'no slot'
        self.at(g)['v'].append((k, item)); return g
    def items(self, g):
        if g not in self.g: return []
        v = self.g[g]['v']
        return [x[1] for x in self.g[g]['s']] + [x[1] for x in v if x[0] != 'V'] + [x[1] for x in v if x[0] == 'V']

def linscan(ivs, pool, name=''):
    free = list(pool); busy = []; out = {}; peak = 0
    for k, (a, b) in sorted(ivs.items(), key=lambda kv: kv[1][0]):
        for e in sorted(busy, key=lambda e: e[0]):
            if e[0] < a: busy.remove(e); free.append(e[1])
        assert free, f'pool {name} exhausted at {a}'
        r = free.pop(0); out[k] = r; busy.append((b, r)); peak = max(peak, len(busy))
    print(f'  pool {name}: peak {peak}/{len(pool)}')
    return out
```

```python
import sys
sys.path.insert(0, 'tools')
from asmlib import *
from sched import *
from diag import rstamp_text
from gen1 import pack_kernel

M, K, N = 2048, 1024, 3584
QROW = N * 4
RS = 464
RING = 65536
NIT = 8

def gemm_kernel(stamps=False, rs=False, aux_out='sc1', xm=4, cpf=True, S=2, pk=False, LA_D=24, LA_P=150, ga=100, age_l=9):
    s = Stream()
    ACC = lambda t, i: 128 + (t * 8 + i) * 4
    slot = lambda it: (it + 1) % 3
    def stamp(k):
        if rs: s(rstamp_text(2 + k, v=(1, 31)))
        if stamps: s(f's_waitcnt lgkmcnt(0)\ns_memtime s[76:77]\ns_waitcnt lgkmcnt(0)\ns_sub_u32 s{96+k}, s76, s82')
    P1 = NIT - S
    mf = []
    for it in range(P1):
        for G in range(7):
            b, t = (0, G) if G < 4 else (1, G - 4)
            for i in range(8):
                for st in range(2): mf.append((t, i, (it, b, st, t), (it, b, st, i)))
    P2 = len(mf)
    steps = [(it, b, st) for it in range(P1, NIT) for b in range(2) for st in range(2)]
    for q in range(4):
        for i in (2*q + 1, 2*q):
            for t in (3, 0, 1, 2):
                for (it, b, st) in steps:
                    if t == 3 and b == 1: continue
                    mf.append((t, i, (it, b, st, t), (it, b, st, i)))
    NG = len(mf)
    assert NG == 896
    QL = 28 * S
    wfirst, wlast, xfirst, xlast, alast = {}, {}, {}, {}, {}
    for g, (t, i, w, x) in enumerate(mf):
        wfirst.setdefault(w, g); wlast[w] = g; xfirst.setdefault(x, g); xlast[x] = g; alast[(t, i)] = g
    gp = Gaps(NG)
    areg = {}; qreg = {}; treg = {}
    aiv = {}; qiv = {}; tiv = {}
    vis = {0: -10**6}
    for it in range(P1):
        g = 112*it + 63
        gp.put(g, 'S', lambda it=it: I('s_barrier', uses={f'q{it}', f'dma{it+1}'})); vis[it + 1] = g
    if S == 2:
        g = P2 - 24
        gp.put(g, 'S', lambda: I('s_barrier', uses={'dma7'})); vis[7] = g
    wkeys = sorted(wfirst, key=lambda w: wfirst[w])
    lk = []
    for w in wkeys:
        if w[0] < P1:
            gam0 = wfirst[w] - w[2]
            for q in range(4): lk.append([w, q, gam0 - LA_D + 2*(4*w[2] + q)])
    l2 = [[w, q, None] for w in wkeys if w[0] >= P1 for q in range(4)]
    gb = P2 + 14*S - 13
    g1 = P2 - LA_D
    nlate = int((gb - g1) * 2 / 3)
    ne = len(l2) - nlate
    for j, e in enumerate(l2):
        e[2] = int(ga + (g1 - ga) * j / ne) | 1 if j < ne else int(g1 + (j - ne) * 1.5)
    def dread(w, q, n): return lambda: I(f'ds_read_b32 {areg[w][0]}{areg[w][1]+q}, v{treg[n]}', defs={'lut'})
    for n, e in enumerate(lk): e.append(gp.put(e[2], 'D', dread(e[0], e[1], n)))
    def qread(x):
        it, b, st, i = x
        sl = slot(it)
        base = 40 + (4 if sl == 2 else 0) + 2*b + st
        off = (0 if sl == 2 else sl*32768) + ((i ^ 1) if b else i) * 2048
        return lambda: I(f'ds_read_b128 {areg[("x",)+x][0]}[{areg[("x",)+x][1]}:{areg[("x",)+x][1]+3}], v{base} offset:{off}', defs={f'q{it}'})
    qslot = lambda k: 1 + 2*(3*(k//2) + k%2)
    oslot = lambda k: 1 + 2*(3*k + 2)
    for it in range(P1):
        for b in range(2):
            for k in range(16):
                x = (it, b, k % 2, k // 2)
                g = gp.put(112*it + (0 if b else -48) + qslot(k), 'Q', qread(x))
                aiv[('x',) + x] = (g, xlast[x])
    for q in range(4):
        xs = sorted([x for x in xfirst if x[0] >= P1 and x[3] // 2 == q], key=lambda x: xfirst[x])
        if q == 0: xs.sort(key=lambda x: (x[0], xfirst[x]))
        for k, x in enumerate(xs):
            if q == 0: nom = P2 - 48 + (qslot(k) if S == 2 else 2*qslot(k) - 1)
            else: nom = P2 + QL*(q-1) + int((k + 1) * QL / len(xs)) - 1
            g = gp.put(max(nom, vis[x[0]] + 1), 'Q', qread(x))
            assert g <= xfirst[x] - 6, (x, g, xfirst[x])
            aiv[('x',) + x] = (g, xlast[x])
    def dma(it):
        out = []
        for half in range(2):
            for j in range(4):
                pre = []
                if half == 0 and j == 0: pre.append(f's_add_u32 m0, s57, {slot(it)*32768}')
                if half == 1 and j == 0: pre.append(f's_add_u32 m0, s57, {slot(it)*32768 + 16384 + 2048}')
                if half == 1 and j == 2: pre.append(f's_add_u32 m0, s57, {slot(it)*32768 + 16384 - 2048}')
                if j == 0: pre.append(f's_add_u32 s56, s55, {(2*it + half)*128}')
                out.append((pre, I(f'buffer_load_dwordx4 v{36+j}, s[8:11], s56 offen offset:{j*1024} lds', defs={f'dma{it}'})))
        return out
    for it in range(2, NIT):
        g0 = 0 if it == 2 else 112*(it - 3) + 64
        prev = g0 - 1
        for k, (pre, d) in enumerate(dma(it)):
            g = gp.put(max(g0 + oslot(k), prev + 3), 'G', lambda d=d: d)
            for n, x in enumerate(pre):
                gs = gp.put(g - 1, 'S', lambda x=x: I(x), back=True)
                assert gs > prev, (it, k, gs, prev)
            prev = g
    n0 = len(lk)
    for n, e in enumerate(l2):
        e.append(gp.put(e[2], 'D', dread(e[0], e[1], n0 + n)))
        assert e[3] <= wfirst[e[0]] - 7, e
    lk += l2
    cfirst, clast = {}, {}
    for w, q, _, g in lk:
        c = w[:3]
        cfirst[c] = min(cfirst.get(c, 10**9), g); clast[c] = max(clast.get(c, -10**9), g)
    pre_p = []
    npl = [0]
    last_p = -1
    for c in sorted(cfirst, key=lambda c: cfirst[c]):
        it, b, st = c
        so = (16*it + 4*st) * QROW
        lds = [lambda sr, c=c, b=b: I(f'buffer_load_dwordx3 v[{qreg[c]}:{qreg[c]+2}], v{32+b}, s[12:15], {sr} offen')]
        if b == 0: lds.append(lambda sr, c=c: I(f'buffer_load_dword v{qreg[c]+3}, v34, s[12:15], {sr} offen'))
        sr = f's{40 + npl[0] % 8}'; npl[0] += 1
        nom = cfirst[c] - LA_P
        if it < 2 and nom < 0:
            pre_p.append((it, f's_mov_b32 {sr}, {so}', [lambda f=f, sr=sr: f(sr) for f in lds]))
            qiv[c] = (-10**5 + npl[0], clast[c])
        else:
            g = max(nom, last_p + 2, 1)
            first = None
            for f in lds:
                g = gp.put(g, 'G', lambda f=f, sr=sr: f(sr))
                if first is None: first = g
                last_p = g; g += 2
            gp.put(first - 1, 'S', lambda sr=sr, so=so: I(f's_mov_b32 {sr}, {so}'), back=True)
            assert last_p < cfirst[c] - 30, (c, last_p, cfirst[c])
            qiv[c] = (first, clast[c])
    g = gp.put(60, 'G', lambda: I('buffer_load_dwordx4 v[48:51], v22, s[32:35], 0 offen'))
    g = gp.put(g + 2, 'G', lambda: I('buffer_load_dwordx2 v[52:53], v22, s[32:35], 0 offen offset:16'))
    g = gp.put(g + 2, 'G', lambda: I('buffer_load_dwordx2 v[54:55], v23, s[32:35], 0 offen'))
    for n, (w, q, _, g) in enumerate(lk):
        c = w[:3]; t = w[3]
        gv = gp.put(g - 2 if g - 2 in gp.g and gp.ok(g - 2, 'V') and gp.at(g - 2)['v'] else g - 1, 'V',
                    lambda n=n, c=c, t=t, q=q: I(f'v_perm_b32 v{treg[n]}, v{qreg[c]+t}, v35, s{36+q}'), back=True)
        tiv[n] = (gv, g)
        a0, b0 = aiv.get(w, (10**9, wlast[w]))
        aiv[w] = (min(a0, g), wlast[w])
    sc_g = P2 - 20
    gsc = []
    for t in range(4):
        for r in range(4):
            j = 3*r + t if t < 3 else 12 + r
            f = (lambda t=t, r=r, j=j: I(f'v_lshlrev_b32 v{qreg[("sc",t)]+r}, 16, v{48+j//2}')) if j % 2 == 0 else \
                (lambda t=t, r=r, j=j: I(f'v_and_b32 v{qreg[("sc",t)]+r}, 0xffff0000, v{48+j//2}'))
            gsc.append(gp.put(sc_g + 2*(4*t + r), 'V', f))
        qiv[('sc', t)] = (min(gsc[-4:]), 10**6)
    DL = 4
    def mulq(t, i, g0):
        c = ACC(t, i); g = g0
        if pk:
            for r in (0, 2):
                g = gp.put(g, 'V', lambda r=r: I(f'v_pk_mul_f32 v[{c+r}:{c+r+1}], v[{c+r}:{c+r+1}], v[{qreg[("sc",t)]+r}:{qreg[("sc",t)]+r+1}]'))
        else:
            for r in range(4):
                g = gp.put(g, 'V', lambda r=r: I(f'v_mul_f32 v{c+r}, v{c+r}, v{qreg[("sc",t)]+r}'))
        return g
    SO = [3, 4, 5, 6, 7, 24, 25, 26, 27, 48, 49, 50, 51, 52, 53, 54]
    def e2(q, gB):
        tail = gB >= NG - 1
        g = gB + (0 if tail else 1)
        rd = []
        for j in range(4):
            k = ('e2', q, j)
            g = gp.put(g, 'Q', lambda k=k, q=q, j=j: I(f'ds_read_b128 v[{qreg[k]}:{qreg[k]+3}], v24 offset:{(32*q + 2*j)*RS}'))
            rd.append(g)
        for j in range(4):
            k = ('e2', q, j); so = SO[4*q + j]
            g = gp.put(max(g + 1, rd[j] + (0 if tail else 8)), 'G', lambda k=k, so=so: I(f'buffer_store_dwordx4 v[{qreg[k]}:{qreg[k]+3}], v25, s[16:19], s{so} offen {aux_out}'))
            gp.put(P2 - 60 + 3*(4*q + j), 'S', lambda q=q, j=j, so=so: I(f's_mov_b32 s{so}, {(32*q + 2*j)*N*2}'))
            qiv[k] = (rd[j], g + 1)
            if not tail: g += 1
    last = max(e[3] for e in lk) + 2
    bq = []
    for q in range(4):
        io, ie = 2*q + 1, 2*q
        c = ACC(3, io)
        g = gp.put(alast[(3, io)] + DL, 'W', lambda c=c, q=q: I(f'ds_write_b128 v29, v[{c}:{c+3}] offset:{q*4096}', defs={f'ex{q}'}))
        bq.append(gp.put(max(g, last) + 5, 'S', lambda q=q: I('s_barrier', uses={f'ex{q}', f'stg{q-1}', 'lut'})))
        if q: e2(q - 1, bq[q])
        gx = gp.put(bq[q] + 1, 'Q', lambda q=q: I(f'ds_read_b128 v[{qreg[("ex",q)]}:{qreg[("ex",q)]+3}], v30 offset:{q*4096}'))
        last = 0
        for i in (io, ie):
            if i == ie:
                c = ACC(3, ie)
                g = max(gx + 8, alast[(3, ie)] + DL, max(gsc) + 1)
                for r in range(4): g = gp.put(g, 'V', lambda r=r, c=c, q=q: I(f'v_add_f32 v{c+r}, v{c+r}, v{qreg[("ex",q)]+r}'))
                g = mulq(3, ie, g)
                for u in range(2): g = gp.put(g, 'V', lambda u=u, c=c, q=q: I(f'v_cvt_pk_bf16_f32 v{qreg[("ex",q)]+u}, v{c+2*u}, v{c+2*u+1}'))
                g = gp.put(g + 1, 'W', lambda q=q: I(f'ds_write_b64 v28, v[{qreg[("ex",q)]}:{qreg[("ex",q)]+1}] offset:{q*32*RS}', defs={f'stg{q}'}))
                qiv[('ex', q)] = (gx, g)
                last = max(last, g)
            g = max(mulq(t, i, max(alast[(t, i)] + DL, max(gsc) + 1)) for t in range(3))
            cv = []
            for u in range(3):
                k = ('cv', i, u // 2)
                g0 = None
                for v in range(2):
                    j0 = 4*u + 2*v; j1 = j0 + 1
                    g = gp.put(g, 'V', lambda k=k, u=u, v=v, j0=j0, j1=j1, i=i: I(f'v_cvt_pk_bf16_f32 v{qreg[k]+2*(u%2)+v}, v{ACC(j0%3, i) + j0//3}, v{ACC(j1%3, i) + j1//3}'))
                    if g0 is None: g0 = g
                if g >= NG: cv.append((k, u, g0)); continue
                gw = gp.put(max(g + 1, bq[0] + 1), 'W', lambda k=k, u=u, i=i, q=q: I(f'ds_write_b64 v{26 + i%2}, v[{qreg[k]+2*(u%2)}:{qreg[k]+2*(u%2)+1}] offset:{q*32*RS + 8*u}', defs={f'stg{q}'}))
                a0, b0 = qiv.get(k, (g0, gw))
                qiv[k] = (min(a0, g0), max(b0, gw))
                last = max(last, gw)
            for k, u, g0 in cv:
                gw = gp.put(g + 1, 'W', lambda k=k, u=u, i=i, q=q: I(f'ds_write_b64 v{26 + i%2}, v[{qreg[k]+2*(u%2)}:{qreg[k]+2*(u%2)+1}] offset:{q*32*RS + 8*u}', defs={f'stg{q}'}))
                a0, b0 = qiv.get(k, (g0, gw))
                qiv[k] = (min(a0, g0), max(b0, gw))
                last = max(last, gw)
    bfin = gp.put(last + 1, 'S', lambda: I('s_barrier', uses={'stg3'}))
    e2(3, bfin)
    print('  quarter barriers at', [b - P2 for b in bq], 'final', bfin - NG)
    areg.update(linscan(aiv, [('a', 4*k) for k in range(64)], 'agpr'))
    qreg.update(linscan(qiv, [64 + 4*k for k in range(16)], 'quads'))
    treg.update(linscan(tiv, list(range(56, 64)) + list(range(8, 16)), 'temps'))

    s('s_cmp_ge_u32 s2, 256\ns_cbranch_scc1 L_end')
    if rs: s(rstamp_text(1, v=(1, 31)))
    if stamps: s('s_memrealtime s[80:81]\ns_memtime s[82:83]')
    s('s_load_dwordx2 s[8:9], s[0:1], 0\ns_load_dwordx4 s[20:23], s[0:1], 16\ns_load_dwordx2 s[12:13], s[0:1], 48\ns_load_dwordx2 s[16:17], s[0:1], 32')
    if cpf:
        s('s_getpc_b64 s[72:73]\ns_mov_b32 s74, L_code_end-af4_gemm_kernel-256\ns_mov_b32 s75, 0x20000')
        s('v_lshlrev_b32 v10, 7, v0')
        s('buffer_load_dword v1, v10, s[72:75], 0 offen offset:256')
    lm = {2: 1, 4: 2, 8: 3, 16: 4}[xm]
    gm = 16 // xm; lgm = 4 - lm
    s('v_lshrrev_b32 v5, 6, v0\nv_and_b32 v2, 63, v0')
    s('s_and_b32 s60, s2, 7\ns_lshr_b32 s61, s2, 3')
    s('v_readfirstlane_b32 s63, v5')
    s('v_lshrrev_b32 v3, 4, v2\nv_and_b32 v4, 15, v2')
    s(f's_and_b32 s58, s60, {gm-1}\ns_lshl_b32 s58, s58, {lm}\ns_and_b32 s62, s61, {xm-1}\ns_add_u32 s58, s58, s62')
    s(f's_lshr_b32 s59, s60, {lgm}\ns_lshl_b32 s59, s59, {5-lm}\ns_lshr_b32 s62, s61, {lm}\ns_add_u32 s59, s59, s62')
    s('s_and_b32 s64, s63, 1\ns_lshr_b32 s65, s63, 1')
    s('v_lshlrev_b32 v5, 1, v4\nv_lshrrev_b32 v6, 4, v0\nv_lshlrev_b32 v6, 1, v6')
    s('s_mul_i32 s66, s59, 224\ns_mul_i32 s67, s65, 112\ns_add_u32 s66, s66, s67')
    s('s_mul_i32 s67, s64, 48\ns_add_u32 s67, s66, s67')
    s(f'v_mul_u32_u24 v7, {QROW}, v3')
    s(f's_mul_i32 s68, s64, {8*QROW}')
    s('s_lshl_b32 s69, s67, 2\ns_add_u32 s70, s69, s68')
    s('v_mad_u32_u24 v33, v4, 12, v7')
    s('v_add_u32 v32, s70, v33')
    s(f's_sub_u32 s70, {8*QROW}, s68\ns_add_u32 s70, s70, s69')
    s('v_add_u32 v33, s70, v33')
    s('s_add_u32 s71, s66, 96\ns_lshl_b32 s70, s71, 2\ns_add_u32 s70, s70, s68')
    s('v_lshl_add_u32 v34, v4, 2, v7\nv_add_u32 v34, s70, v34')
    s('v_lshrrev_b32 v8, 3, v0\nv_and_b32 v9, 7, v2\nv_xor_b32 v9, v9, v3')
    s('s_mul_i32 s70, s63, 24\nv_add_lshl_u32 v8, v8, s70, 11')
    s('v_lshl_add_u32 v36, v9, 4, v8')
    s('v_xor_b32 v37, 64, v36')
    s(f'v_add_u32 v38, {2*(8*2048-1024)}, v36')
    s(f'v_add_u32 v37, {8*2048-1024}, v37')
    s(f'v_add_u32 v39, {2*(8*2048-1024)}, v37')
    s(f's_mov_b32 s10, {M*K*2}\ns_mov_b32 s11, 0x20000')
    s(f's_mov_b32 s14, {K//8*QROW}\ns_mov_b32 s15, 0x20000')
    s(f's_mov_b32 s30, 32\ns_mov_b32 s31, 0x20000')
    s('s_lshl_b32 s55, s58, 18')
    s(f's_lshl_b32 s57, s63, 12\ns_add_u32 s57, s57, {RING}')
    s('s_waitcnt lgkmcnt(0)')
    s('s_mov_b32 s28, s20\ns_mov_b32 s29, s21')
    s('buffer_load_ushort v16, v5, s[28:31], 0 offen')
    s('buffer_load_ushort v17, v6, s[28:31], 0 offen')
    for it in range(2):
        for i2, sm, fs in pre_p:
            if i2 == it:
                s(sm)
                for f in fs: s(f())
        for pre, d in dma(it):
            for x in pre: s(x)
            s(d)
    s(f's_mov_b32 s32, s22\ns_mov_b32 s33, s23\ns_mov_b32 s34, {N*2}\ns_mov_b32 s35, 0x20000')
    s(f's_mov_b32 s18, {M*N*2}\ns_mov_b32 s19, 0x20000')
    for b in range(4): s(f's_mov_b32 s{36+b}, {0x0c0c0000 | ((4+b) << 8)}')
    s('v_and_b32 v18, 7, v0\nv_lshlrev_b32 v18, 4, v18\nv_lshl_add_u32 v18, v0, 8, v18')
    s('v_and_b32 v35, 31, v2\nv_lshlrev_b32 v35, 2, v35')
    s('v_lshrrev_b32 v8, 1, v4\nv_xor_b32 v8, v8, v3\nv_lshlrev_b32 v8, 4, v8\nv_lshl_add_u32 v8, v4, 7, v8')
    s(f's_lshl_b32 s70, s64, 14\ns_add_u32 s72, s70, {RING}\ns_sub_u32 s73, {RING + 16384}, s70')
    s('v_add_u32 v40, s72, v8\nv_add_u32 v42, s73, v8\nv_xor_b32 v41, 64, v40\nv_xor_b32 v43, 64, v42')
    for k in range(4): s(f'v_add_u32 v{44+k}, 65536, v{40+k}')
    s('s_lshl_b32 s70, s67, 1\nv_mad_u32_u24 v22, v3, 24, s70')
    s('s_lshl_b32 s70, s71, 1\nv_lshl_add_u32 v23, v3, 3, s70')
    s(f'v_mul_u32_u24 v8, {RS}, v4')
    s(f's_mul_i32 s70, s64, {16*RS}\ns_mul_i32 s72, s65, 224\ns_mul_i32 s73, s64, 96\ns_add_u32 s73, s73, s72')
    s('v_mad_u32_u24 v9, v3, 24, v8')
    s('s_add_u32 s74, s73, s70\nv_add_u32 v26, s74, v9')
    s(f's_sub_u32 s74, {16*RS}, s70\ns_add_u32 s74, s74, s73\nv_add_u32 v27, s74, v9')
    s('s_add_u32 s74, s72, s70\ns_add_u32 s74, s74, 192\nv_lshl_add_u32 v28, v3, 3, v8\nv_add_u32 v28, s74, v28')
    s(f'v_lshlrev_b32 v29, 4, v0\nv_add_u32 v29, {RING}, v29\nv_xor_b32 v30, 1024, v29')
    s('v_mul_u32_u24 v8, 2341, v2\nv_lshrrev_b32 v8, 16, v8')
    s(f's_mul_i32 s73, s63, {8*RS}')
    s('v_add_lshl_u32 v24, v2, v8, 4\nv_add_u32 v24, s73, v24')
    s(f's_lshl_b32 s74, s58, 7\ns_lshl_b32 s75, s63, 3\ns_add_u32 s74, s74, s75\ns_mul_i32 s74, s74, {N*2}\ns_mul_i32 s75, s59, 448\ns_add_u32 s74, s74, s75')
    s(f'v_mul_u32_u24 v9, {N*2 - 448}, v8\nv_lshl_add_u32 v25, v2, 4, v9')
    s('v_lshrrev_b32 v8, 1, v8\nv_lshlrev_b32 v8, 30, v8\nv_add3_u32 v25, v25, v8, s74')
    assert RS - 448 == 16 and all((l * 2341) >> 16 == l // 28 for l in range(64))
    for r in range(56, 60): s(f'v_lshl_or_b32 v{r}, v17, 16, v16')
    for j in range(1, 8): s(f'v_xor_b32 v{8 + j}, {16*j}, v18')
    for j in range(8): s(f'ds_write_b128 v{8 + j if j else 18}, v[56:59]', defs={'tbl'})
    neg = [f() for g in sorted(gp.g) if g < 0 for f in gp.items(g)]
    pv = [x for x in neg if x.kind == 'V']
    assert len(set(tuple(x.w) for x in pv)) == len(pv)
    for x in pv: s(I(x.text, uses={'tbl'}))
    s('s_barrier', uses={'tbl', 'dma0'})
    stamp(0)
    rd = [x for x in neg if x.kind != 'V']
    dd = [x for x in rd if x.op == 'ds_read_b32']; qq = [x for x in rd if x.op != 'ds_read_b32']
    for x in dd[:4] + qq[:1] + dd[4:8] + qq[1:] + dd[8:]: s(x)
    for g in range(NG):
        t, i, w, x = mf[g]
        c = ACC(t, i)
        src = '0' if (x[0] == 0 and x[1] == 0 and x[2] == 0) else f'v[{c}:{c+3}]'
        A, B = areg[w], areg[('x',) + x]
        s(f'v_mfma_f32_16x16x32_bf16 v[{c}:{c+3}], {A[0]}[{A[1]}:{A[1]+3}], {B[0]}[{B[1]}:{B[1]+3}], {src}')
        if g == P2 - 1: stamp(1)
        if g == NG - 1: stamp(2)
        for f in gp.items(g): s(f())
    for g in sorted(gp.g):
        if g >= NG:
            for f in gp.items(g): s(f())
    stamp(3)
    st = s.finish(age_l=age_l)
    nfill = {}
    cur = None
    for x in st:
        if x.kind == 'M':
            if cur is not None: nfill[cur] = nfill.get(cur, 0) + 1
            cur = 0
        elif cur is not None: cur += 1
    print('  fillers/gap histogram', sorted(nfill.items()))
    body = render(st)
    if stamps:
        a = Asm()
        a('s_waitcnt vmcnt(0)')
        a('s_mov_b32 s79, 0')
        stamp_end(a, 80, 84, 2, 8, nst=8, extra=[(96+k, 79) for k in range(4)])
        body += a.text()
    body += 'L_end:\n    s_endpgm\nL_code_end:\n'
    return body

def kernels(**kw):
    pk = {k[2:]: v for k, v in kw.items() if k.startswith('p_')}
    gk = {k: v for k, v in kw.items() if not k.startswith('p_')}
    return [dict(name='af4_pack_kernel', body=pack_kernel(**pk), grid=448, block=256, lds=0, vgpr=40, accum=40, sgpr=40),
            dict(name='af4_gemm_kernel', body=gemm_kernel(**gk), grid=256, block=256, lds=163840, vgpr=512, accum=256, sgpr=102)]
if __name__ == '__main__':
    open('v2.s', 'w').write(multi(kernels()))
    open('v2_st.s', 'w').write(multi(kernels(stamps=True)))
    open('v2s1.s', 'w').write(multi(kernels(S=1, ga=400, pk=True)))
    open('v2s1_st.s', 'w').write(multi(kernels(stamps=True, S=1, ga=400, pk=True)))
    open('v2pk.s', 'w').write(multi(kernels(pk=True)))
    open('v2pk_st.s', 'w').write(multi(kernels(stamps=True, pk=True)))
```

```python
import sys
sys.path.insert(0, 'tools')
from asmlib import *
from sched import *
from diag import rstamp_text

M, K, N = 2048, 1024, 3584
QROW = N * 4
RS = 464
RING = 65536
NIT = 8
PROW = 1024
FOFF = 4 << 20
TAGC = (0x7f4a7c15, 0x9e3779b9)

def gemm_kernel(stamps=False, rs=False, aux_out='sc1', xm=4, cpf=True, S=2, pk=False, LA_D=24, LA_P=150, ga=100, age_l=9, ticks=(), nostore=False, pticks=False, fstride=8, kap=(0,1,2,4,5,6,3,7), need0=64, g_flag1=50, g_poll1=150, aux_q='', aux_p='sc1', sleep=0):
    s = Stream()
    ACC = lambda t, i: 128 + (t * 8 + i) * 4
    slot = lambda it: (it + 1) % 3
    def stamp(k):
        if rs: s(rstamp_text(2 + k, v=(1, 31)))
        if stamps: s(f's_waitcnt lgkmcnt(0)\ns_memtime s[100:101]\ns_waitcnt lgkmcnt(0)\ns_sub_u32 s{96+k}, s100, s82')
    P1 = NIT - S
    mf = []
    for it in range(P1):
        for G in range(7):
            b, t = (0, G) if G < 4 else (1, G - 4)
            for i in range(8):
                for st in range(2): mf.append((t, i, (it, b, st, t), (it, b, st, i)))
    P2 = len(mf)
    steps = [(it, b, st) for it in range(P1, NIT) for b in range(2) for st in range(2)]
    for q in range(4):
        for i in (2*q + 1, 2*q):
            for t in (3, 0, 1, 2):
                for (it, b, st) in steps:
                    if t == 3 and b == 1: continue
                    mf.append((t, i, (it, b, st, t), (it, b, st, i)))
    NG = len(mf)
    assert NG == 896
    QL = 28 * S
    wfirst, wlast, xfirst, xlast, alast = {}, {}, {}, {}, {}
    for g, (t, i, w, x) in enumerate(mf):
        wfirst.setdefault(w, g); wlast[w] = g; xfirst.setdefault(x, g); xlast[x] = g; alast[(t, i)] = g
    gp = Gaps(NG)
    areg = {}; qreg = {}; treg = {}
    aiv = {}; qiv = {}; tiv = {}
    vis = {0: -10**6}
    for it in range(P1):
        g = 112*it + 63
        gp.put(g, 'S', lambda it=it: I('s_barrier', uses={f'q{it}', f'dma{it+1}'})); vis[it + 1] = g
    if S == 2:
        g = P2 - 24
        gp.put(g, 'S', lambda: I('s_barrier', uses={'dma7'})); vis[7] = g
    wkeys = sorted(wfirst, key=lambda w: wfirst[w])
    lk = []
    for w in wkeys:
        if w[0] < P1:
            gam0 = wfirst[w] - w[2]
            for q in range(4): lk.append([w, q, gam0 - LA_D + 2*(4*w[2] + q)])
    l2 = [[w, q, None] for w in sorted(wkeys, key=lambda w: (w[0], wfirst[w])) if w[0] >= P1 for q in range(4)]
    gb = P2 + 14*S - 13 - (8 if S == 2 else 0)
    g1 = P2 - LA_D
    nlate = int((gb - g1) * 2 / 3)
    ne = len(l2) - nlate
    for j, e in enumerate(l2):
        e[2] = int(ga + (g1 - ga) * j / ne) | 1 if j < ne else int(g1 + (j - ne) * 1.5)
    def dread(w, q, n): return lambda: I(f'ds_read_b32 {areg[w][0]}{areg[w][1]+q}, v{treg[n]}', defs={'lut'})
    for n, e in enumerate(lk): e.append(gp.put(e[2], 'D', dread(e[0], e[1], n)))
    def qread(x):
        it, b, st, i = x
        sl = slot(it)
        base = 40 + (4 if sl == 2 else 0) + 2*b + st
        off = (0 if sl == 2 else sl*32768) + ((i ^ 1) if b else i) * 2048
        return lambda: I(f'ds_read_b128 {areg[("x",)+x][0]}[{areg[("x",)+x][1]}:{areg[("x",)+x][1]+3}], v{base} offset:{off}', defs={f'q{it}'})
    qslot = lambda k: 1 + 2*(3*(k//2) + k%2)
    oslot = lambda k: 1 + 2*(3*k + 2)
    for it in range(P1):
        for b in range(2):
            for k in range(16):
                x = (it, b, k % 2, k // 2)
                g = gp.put(112*it + (0 if b else -48) + qslot(k), 'Q', qread(x))
                aiv[('x',) + x] = (g, xlast[x])
    for q in range(4):
        xs = sorted([x for x in xfirst if x[0] >= P1 and x[3] // 2 == q], key=lambda x: xfirst[x])
        if q == 0: xs.sort(key=lambda x: (x[0], xfirst[x]))
        for k, x in enumerate(xs):
            if q == 0: nom = P2 - 48 + (qslot(k) if S == 2 else 2*qslot(k) - 1)
            else: nom = P2 + QL*(q-1) + int((k + 1) * QL / len(xs)) - 1
            g = gp.put(max(nom, vis[x[0]] + 1), 'Q', qread(x))
            assert g <= xfirst[x] - 6, (x, g, xfirst[x])
            aiv[('x',) + x] = (g, xlast[x])
    def dma(it):
        out = []
        for half in range(2):
            for j in range(4):
                pre = []
                if half == 0 and j == 0: pre.append(f's_add_u32 m0, s57, {slot(it)*32768}')
                if half == 1 and j == 0: pre.append(f's_add_u32 m0, s57, {slot(it)*32768 + 16384 + 2048}')
                if half == 1 and j == 2: pre.append(f's_add_u32 m0, s57, {slot(it)*32768 + 16384 - 2048}')
                if j == 0: pre.append(f's_add_u32 s56, s55, {(2*kap[it] + half)*128}')
                out.append((pre, I(f'buffer_load_dwordx4 v{36+j}, s[8:11], s56 offen offset:{j*1024} lds', defs={f'dma{it}'})))
        return out
    for it in range(2, NIT):
        g0 = 0 if it == 2 else 112*(it - 3) + 64
        prev = g0 - 1
        for k, (pre, d) in enumerate(dma(it)):
            g = gp.put(max(g0 + oslot(k), prev + 3), 'G', lambda d=d: d)
            for n, x in enumerate(pre):
                gs = gp.put(g - 1, 'S', lambda x=x: I(x), back=True)
                assert gs > prev, (it, k, gs, prev)
            prev = g
    n0 = len(lk)
    for n, e in enumerate(l2):
        e.append(gp.put(e[2], 'D', dread(e[0], e[1], n0 + n)))
        assert e[3] <= wfirst[e[0]] - 7, e
    lk += l2
    g = gp.put(g_flag1, 'G', lambda: I(f'buffer_store_dwordx2 v[20:21], v19, s[12:15], 0 offen offset:{0} sc1', uses={'st1'}))
    g = gp.put(g_poll1, 'G', lambda: I(f'buffer_load_dwordx2 v[6:7], v5, s[12:15], s78 offen sc1'))
    g = gp.put(g + 45, 'V', lambda: I('v_cmp_ne_u64 vcc, s[76:77], v[6:7]'))
    g_chk1 = gp.put(g + 2, 'S', lambda: I('s_cbranch_vccnz L_slow1'))
    gp.at(g_chk1)['s'].append(('S', lambda: I('L_back1:')))
    cfirst, clast = {}, {}
    for w, q, _, g in lk:
        c = w[:3]
        cfirst[c] = min(cfirst.get(c, 10**9), g); clast[c] = max(clast.get(c, -10**9), g)
    pre_p = []
    npl = [0]
    last_p = -1
    for c in sorted(cfirst, key=lambda c: cfirst[c]):
        it, b, st = c
        so = (16*kap[it] + 4*st) * PROW
        lds = [lambda sr, c=c, b=b: I(f'buffer_load_dwordx3 v[{qreg[c]}:{qreg[c]+2}], v{32+b}, s[12:15], {sr} offen {aux_p}')]
        if b == 0: lds.append(lambda sr, c=c: I(f'buffer_load_dword v{qreg[c]+3}, v34, s[12:15], {sr} offen {aux_p}'))
        sr = f's{40 + npl[0] % 8}'; npl[0] += 1
        nom = cfirst[c] - LA_P
        if it < 2 and nom < 0:
            pre_p.append((it, f's_mov_b32 {sr}, {so}', [lambda f=f, sr=sr: f(sr) for f in lds]))
            qiv[c] = (-10**5 + npl[0], clast[c])
        else:
            g = max(nom, last_p + 2, 1, g_chk1 + 1 if kap[it] >= 4 else 0)
            first = None
            for f in lds:
                g = gp.put(g, 'G', lambda f=f, sr=sr: f(sr))
                if first is None: first = g
                last_p = g; g += 2
            gp.put(first - 1, 'S', lambda sr=sr, so=so: I(f's_mov_b32 {sr}, {so}'), back=True)
            assert last_p < cfirst[c] - 30, (c, last_p, cfirst[c])
            qiv[c] = (first, clast[c])
    g = gp.put(60, 'G', lambda: I('buffer_load_dwordx4 v[48:51], v22, s[32:35], 0 offen'))
    g = gp.put(g + 2, 'G', lambda: I('buffer_load_dwordx2 v[52:53], v22, s[32:35], 0 offen offset:16'))
    g = gp.put(g + 2, 'G', lambda: I('buffer_load_dwordx2 v[54:55], v23, s[32:35], 0 offen'))
    for n, (w, q, _, g) in enumerate(lk):
        c = w[:3]; t = w[3]
        gv = gp.put(g - 2 if g - 2 in gp.g and gp.ok(g - 2, 'V') and gp.at(g - 2)['v'] else g - 1, 'V',
                    lambda n=n, c=c, t=t, q=q: I(f'v_perm_b32 v{treg[n]}, v{qreg[c]+t}, v35, s{36+q}'), back=True)
        tiv[n] = (gv, g)
        a0, b0 = aiv.get(w, (10**9, wlast[w]))
        aiv[w] = (min(a0, g), wlast[w])
    sc_g = P2 - 20
    gsc = []
    for t in range(4):
        for r in range(4):
            j = 3*r + t if t < 3 else 12 + r
            f = (lambda t=t, r=r, j=j: I(f'v_lshlrev_b32 v{qreg[("sc",t)]+r}, 16, v{48+j//2}')) if j % 2 == 0 else \
                (lambda t=t, r=r, j=j: I(f'v_and_b32 v{qreg[("sc",t)]+r}, 0xffff0000, v{48+j//2}'))
            gsc.append(gp.put(sc_g + 2*(4*t + r), 'V', f))
        qiv[('sc', t)] = (min(gsc[-4:]), 10**6)
    DL = 4
    def mulq(t, i, g0):
        c = ACC(t, i); g = g0
        if pk:
            for r in (0, 2):
                g = gp.put(g, 'V', lambda r=r: I(f'v_pk_mul_f32 v[{c+r}:{c+r+1}], v[{c+r}:{c+r+1}], v[{qreg[("sc",t)]+r}:{qreg[("sc",t)]+r+1}]'))
        else:
            for r in range(4):
                g = gp.put(g, 'V', lambda r=r: I(f'v_mul_f32 v{c+r}, v{c+r}, v{qreg[("sc",t)]+r}'))
        return g
    SO = [3, 4, 5, 6, 7, 24, 25, 26, 27, 48, 49, 50, 51, 52, 53, 54]
    def e2(q, gB):
        tail = gB >= NG - 1
        g = gB + (0 if tail else 1)
        rd = []
        for j in range(4):
            k = ('e2', q, j)
            g = gp.put(g, 'Q', lambda k=k, q=q, j=j: I(f'ds_read_b128 v[{qreg[k]}:{qreg[k]+3}], v24 offset:{(32*q + 2*j)*RS}'))
            rd.append(g)
        for j in range(4):
            k = ('e2', q, j); so = SO[4*q + j]
            g = gp.put(max(g + 1, rd[j] + (0 if tail else 8)), 'G', lambda k=k, so=so: I(f'buffer_store_dwordx4 v[{qreg[k]}:{qreg[k]+3}], v25, s[16:19], s{so} offen {aux_out}'))
            gp.put(P2 - 60 + 3*(4*q + j), 'S', lambda q=q, j=j, so=so: I(f's_mov_b32 s{so}, {(32*q + 2*j)*N*2}'))
            qiv[k] = (rd[j], g + 1)
            if not tail: g += 1
    last = max(e[3] for e in lk) + 2
    bq = []
    for q in range(4):
        io, ie = 2*q + 1, 2*q
        c = ACC(3, io)
        g = gp.put(alast[(3, io)] + DL, 'W', lambda c=c, q=q: I(f'ds_write_b128 v29, v[{c}:{c+3}] offset:{q*4096}', defs={f'ex{q}'}))
        bq.append(gp.put(max(g, last) + 5, 'S', lambda q=q: I('s_barrier', uses={f'ex{q}', f'stg{q-1}', 'lut'})))
        if q: e2(q - 1, bq[q])
        gx = gp.put(bq[q] + 1, 'Q', lambda q=q: I(f'ds_read_b128 v[{qreg[("ex",q)]}:{qreg[("ex",q)]+3}], v30 offset:{q*4096}'))
        last = 0
        for i in (io, ie):
            if i == ie:
                c = ACC(3, ie)
                g = max(gx + 8, alast[(3, ie)] + DL, max(gsc) + 1)
                for r in range(4): g = gp.put(g, 'V', lambda r=r, c=c, q=q: I(f'v_add_f32 v{c+r}, v{c+r}, v{qreg[("ex",q)]+r}'))
                g = mulq(3, ie, g)
                for u in range(2): g = gp.put(g, 'V', lambda u=u, c=c, q=q: I(f'v_cvt_pk_bf16_f32 v{qreg[("ex",q)]+u}, v{c+2*u}, v{c+2*u+1}'))
                g = gp.put(g + 1, 'W', lambda q=q: I(f'ds_write_b64 v28, v[{qreg[("ex",q)]}:{qreg[("ex",q)]+1}] offset:{q*32*RS}', defs={f'stg{q}'}))
                qiv[('ex', q)] = (gx, g)
                last = max(last, g)
            g = max(mulq(t, i, max(alast[(t, i)] + DL, max(gsc) + 1)) for t in range(3))
            cv = []
            for u in range(3):
                k = ('cv', i, u // 2)
                g0 = None
                for v in range(2):
                    j0 = 4*u + 2*v; j1 = j0 + 1
                    g = gp.put(g, 'V', lambda k=k, u=u, v=v, j0=j0, j1=j1, i=i: I(f'v_cvt_pk_bf16_f32 v{qreg[k]+2*(u%2)+v}, v{ACC(j0%3, i) + j0//3}, v{ACC(j1%3, i) + j1//3}'))
                    if g0 is None: g0 = g
                if g >= NG: cv.append((k, u, g0)); continue
                gw = gp.put(max(g + 1, bq[0] + 1), 'W', lambda k=k, u=u, i=i, q=q: I(f'ds_write_b64 v{26 + i%2}, v[{qreg[k]+2*(u%2)}:{qreg[k]+2*(u%2)+1}] offset:{q*32*RS + 8*u}', defs={f'stg{q}'}))
                a0, b0 = qiv.get(k, (g0, gw))
                qiv[k] = (min(a0, g0), max(b0, gw))
                last = max(last, gw)
            for k, u, g0 in cv:
                gw = gp.put(g + 1, 'W', lambda k=k, u=u, i=i, q=q: I(f'ds_write_b64 v{26 + i%2}, v[{qreg[k]+2*(u%2)}:{qreg[k]+2*(u%2)+1}] offset:{q*32*RS + 8*u}', defs={f'stg{q}'}))
                a0, b0 = qiv.get(k, (g0, gw))
                qiv[k] = (min(a0, g0), max(b0, gw))
                last = max(last, gw)
    bfin = gp.put(last + 1, 'S', lambda: I('s_barrier', uses={'stg3'}))
    e2(3, bfin)
    print('  quarter barriers at', [b - P2 for b in bq], 'final', bfin - NG)
    areg.update(linscan(aiv, [('a', 4*k) for k in range(64)], 'agpr'))
    qreg.update(linscan(qiv, [64 + 4*k for k in range(16)], 'quads'))
    treg.update(linscan(tiv, list(range(56, 64)) + list(range(8, 16)), 'temps'))

    ptk = [0]
    def pt():
        if pticks: s(f's_memtime s[{84+2*ptk[0]}:{85+2*ptk[0]}]'); ptk[0] += 1
    s('s_cmp_ge_u32 s2, 256\ns_cbranch_scc1 L_end')
    if rs: s(rstamp_text(0, v=(1, 31)))
    if stamps: s('s_memrealtime s[80:81]\ns_memtime s[82:83]')
    s('s_load_dwordx2 s[4:5], s[0:1], 8\ns_load_dwordx2 s[12:13], s[0:1], 48\ns_load_dwordx2 s[8:9], s[0:1], 0\ns_load_dwordx4 s[20:23], s[0:1], 16\ns_load_dwordx2 s[16:17], s[0:1], 32')
    if cpf:
        s(f's_getpc_b64 s[72:73]\ns_mov_b32 s74, L_code_end-{KNAME}-256\ns_mov_b32 s75, 0x20000')
        s('v_lshlrev_b32 v10, 7, v0')
        s('buffer_load_dword v1, v10, s[72:75], 0 offen offset:256')
    lm = {2: 1, 4: 2, 8: 3, 16: 4}[xm]
    gm = 16 // xm; lgm = 4 - lm
    s('v_lshrrev_b32 v5, 6, v0\nv_and_b32 v2, 63, v0')
    s('s_and_b32 s60, s2, 7\ns_lshr_b32 s61, s2, 3')
    s('v_readfirstlane_b32 s63, v5')
    s(f's_and_b32 s58, s60, {gm-1}\ns_lshl_b32 s58, s58, {lm}\ns_and_b32 s62, s61, {xm-1}\ns_add_u32 s58, s58, s62')
    s(f's_lshr_b32 s59, s60, {lgm}\ns_lshl_b32 s59, s59, {5-lm}\ns_lshr_b32 s62, s61, {lm}\ns_add_u32 s59, s59, s62')
    s('v_add_u32 v8, 8, v2\nv_lshrrev_b32 v8, 6, v8\nv_lshlrev_b32 v8, 30, v8\nv_lshl_add_u32 v18, v2, 4, v8')
    s('s_lshl_b32 s60, s58, 2\ns_add_u32 s60, s60, s63')
    s(f's_mul_i32 s61, s60, {8*QROW}\ns_mul_i32 s62, s59, 896\ns_add_u32 s61, s61, s62')
    s(f's_mov_b32 s6, {K*QROW}\ns_mov_b32 s7, 0x20000')
    s(f's_mov_b32 s14, {8 << 20}\ns_mov_b32 s15, 0x20000')
    s(f's_mul_i32 s78, s59, {128*fstride + 128}\ns_add_u32 s78, s78, {FOFF}')
    s('s_waitcnt lgkmcnt(0)')
    pt()
    s('s_load_dwordx2 s[76:77], s[12:13], s78')
    def qload(r):
        for e in range(8):
            s(f'buffer_load_dwordx4 v[{128+32*r+4*e}:{131+32*r+4*e}], v18, s[4:7], s61 offen {aux_q}')
            s(f's_add_u32 s61, s61, {QROW if e < 7 else (512 - 7)*QROW}')
    def qpack(r):
        b = 128 + 32*r
        for e in (1, 3, 5, 7):
            for c in range(4): s(f'v_lshl_or_b32 v{b+4*e-4+c}, v{b+4*e+c}, 4, v{b+4*e-4+c}')
            if e in (3, 7):
                for c in range(4): s(f'v_lshl_or_b32 v{b+4*e-12+c}, v{b+4*e-4+c}, 8, v{b+4*e-12+c}')
        for c in range(4): s(f'v_lshl_or_b32 v{b+c}, v{b+16+c}, 16, v{b+c}')
        s(f'buffer_store_dwordx4 v[{b}:{b+3}], v18, s[12:15], s62 offen sc1', defs={f'st{r}'})
        if r == 0: s(f's_add_u32 s62, s62, {64*PROW}')
    qload(0)
    s('v_lshrrev_b32 v3, 4, v2\nv_and_b32 v4, 15, v2')
    s('v_lshrrev_b32 v8, 3, v0\nv_and_b32 v9, 7, v2\nv_xor_b32 v9, v9, v3')
    s('s_mul_i32 s70, s63, 24\nv_add_lshl_u32 v8, v8, s70, 11')
    s('v_lshl_add_u32 v36, v9, 4, v8')
    s('v_xor_b32 v37, 64, v36')
    s(f'v_add_u32 v38, {2*(8*2048-1024)}, v36')
    s(f'v_add_u32 v37, {8*2048-1024}, v37')
    s(f'v_add_u32 v39, {2*(8*2048-1024)}, v37')
    s('v_lshlrev_b32 v5, 1, v4\nv_lshrrev_b32 v6, 4, v0\nv_lshlrev_b32 v6, 1, v6')
    s(f's_mov_b32 s10, {M*K*2}\ns_mov_b32 s11, 0x20000')
    s(f's_mov_b32 s28, s20\ns_mov_b32 s29, s21\ns_mov_b32 s30, 32\ns_mov_b32 s31, 0x20000')
    s('s_lshl_b32 s55, s58, 18')
    s(f's_lshl_b32 s57, s63, 12\ns_add_u32 s57, s57, {RING}')
    s('buffer_load_ushort v16, v5, s[28:31], 0 offen')
    s('buffer_load_ushort v17, v6, s[28:31], 0 offen')
    def emit_dma(it):
        for pre, d in dma(it):
            for x in pre: s(x)
            s(d)
    emit_dma(0)
    s('s_and_b32 s64, s63, 1\ns_lshr_b32 s65, s63, 1')
    s(f's_lshl_b32 s68, s59, 17\ns_lshl_b32 s62, s60, 10\ns_add_u32 s62, s62, s68')
    s('s_mul_i32 s66, s65, 112\ns_mul_i32 s67, s64, 48\ns_add_u32 s67, s66, s67')
    s(f's_lshl_b32 s69, s64, 13')
    s('v_lshlrev_b32 v7, 10, v3')
    s('s_lshl_b32 s70, s67, 2\ns_add_u32 s70, s70, s68')
    s('v_mad_u32_u24 v33, v4, 12, v7')
    s('s_add_u32 s71, s70, s69\nv_add_u32 v32, s71, v33')
    s(f's_sub_u32 s71, {8*PROW}, s69\ns_add_u32 s71, s71, s70\nv_add_u32 v33, s71, v33')
    s('s_add_u32 s71, s66, 96\ns_lshl_b32 s70, s71, 2\ns_add_u32 s70, s70, s68\ns_add_u32 s70, s70, s69')
    s('v_lshl_add_u32 v34, v4, 2, v7\nv_add_u32 v34, s70, v34')
    s(f's_mul_i32 s70, s59, 224\ns_add_u32 s67, s67, s70\ns_add_u32 s71, s71, s70')
    s('s_lshl_b32 s70, s67, 1\nv_mad_u32_u24 v22, v3, 24, s70')
    s('s_lshl_b32 s70, s71, 1\nv_lshl_add_u32 v23, v3, 3, s70')
    s('s_add_u32 s78, s78, 128')
    s(f's_mul_i32 s70, s60, {fstride}\ns_add_u32 s70, s70, s78')
    s('v_min_u32 v19, 1, v2\nv_lshlrev_b32 v19, 30, v19\nv_add_u32 v19, s70, v19')
    s(f'v_mul_u32_u24 v5, {fstride}, v2')
    s('s_waitcnt lgkmcnt(0)')
    s(f's_add_u32 s76, s76, {TAGC[0]}\ns_addc_u32 s77, s77, {TAGC[1]}')
    s('v_mov_b32 v20, s76\nv_mov_b32 v21, s77')
    qpack(0)
    pt()
    qload(1)
    emit_dma(1)
    s('buffer_store_dwordx2 v[20:21], v19, s[12:15], 0 offen sc1', uses={'st0'})
    pt()
    s(f'v_add_u32 v19, {64*fstride}, v19')
    s(f's_mov_b32 s32, s22\ns_mov_b32 s33, s23\ns_mov_b32 s34, {N*2}\ns_mov_b32 s35, 0x20000')
    s(f's_mov_b32 s18, {0 if nostore else M*N*2}\ns_mov_b32 s19, 0x20000')
    for b in range(4): s(f's_mov_b32 s{36+b}, {0x0c0c0000 | ((4+b) << 8)}')
    s('v_and_b32 v8, 7, v0\nv_lshlrev_b32 v8, 4, v8\nv_lshl_add_u32 v8, v0, 8, v8')
    for r in range(56, 60): s(f'v_lshl_or_b32 v{r}, v17, 16, v16')
    for j in range(1, 8): s(f'v_xor_b32 v{8 + j}, {16*j}, v8')
    for j in range(8): s(f'ds_write_b128 v{8 + j}, v[56:59]', defs={'tbl'})
    s('v_and_b32 v35, 31, v2\nv_lshlrev_b32 v35, 2, v35')
    s('v_lshrrev_b32 v16, 1, v4\nv_xor_b32 v16, v16, v3\nv_lshlrev_b32 v16, 4, v16\nv_lshl_add_u32 v16, v4, 7, v16')
    s(f's_lshl_b32 s70, s64, 14\ns_add_u32 s72, s70, {RING}\ns_sub_u32 s73, {RING + 16384}, s70')
    s('v_add_u32 v40, s72, v16\nv_add_u32 v42, s73, v16\nv_xor_b32 v41, 64, v40\nv_xor_b32 v43, 64, v42')
    for k in range(4): s(f'v_add_u32 v{44+k}, 65536, v{40+k}')
    s(f'v_mul_u32_u24 v16, {RS}, v4')
    s(f's_mul_i32 s70, s64, {16*RS}\ns_mul_i32 s72, s65, 224\ns_mul_i32 s73, s64, 96\ns_add_u32 s73, s73, s72')
    s('v_mad_u32_u24 v17, v3, 24, v16')
    s('s_add_u32 s74, s73, s70\nv_add_u32 v26, s74, v17')
    s(f's_sub_u32 s74, {16*RS}, s70\ns_add_u32 s74, s74, s73\nv_add_u32 v27, s74, v17')
    s('s_add_u32 s74, s72, s70\ns_add_u32 s74, s74, 192\nv_lshl_add_u32 v28, v3, 3, v16\nv_add_u32 v28, s74, v28')
    s(f'v_lshlrev_b32 v29, 4, v0\nv_add_u32 v29, {RING}, v29\nv_xor_b32 v30, 1024, v29')
    s('v_mul_u32_u24 v16, 2341, v2\nv_lshrrev_b32 v16, 16, v16')
    s(f's_mul_i32 s73, s63, {8*RS}')
    s('v_add_lshl_u32 v24, v2, v16, 4\nv_add_u32 v24, s73, v24')
    s(f's_lshl_b32 s74, s58, 7\ns_lshl_b32 s75, s63, 3\ns_add_u32 s74, s74, s75\ns_mul_i32 s74, s74, {N*2}\ns_mul_i32 s75, s59, 448\ns_add_u32 s74, s74, s75')
    s(f'v_mul_u32_u24 v17, {N*2 - 448}, v16\nv_lshl_add_u32 v25, v2, 4, v17')
    s('v_lshrrev_b32 v16, 1, v16\nv_lshlrev_b32 v16, 30, v16\nv_add3_u32 v25, v25, v16, s74')
    assert RS - 448 == 16 and all((l * 2341) >> 16 == l // 28 for l in range(64))
    s('s_barrier', uses={'tbl', 'dma0'})
    neg = [f() for g in sorted(gp.g) if g < 0 for f in gp.items(g)]
    for x in neg:
        if x.op == 'ds_read_b128': s(x)
    pt()
    s('s_mov_b32 s79, 0')
    s('L_poll0:')
    s('buffer_load_dwordx2 v[6:7], v5, s[12:15], s78 offen sc1')
    s('s_add_u32 s79, s79, 1\ns_cmp_gt_u32 s79, 20000\ns_cbranch_scc1 L_go0')
    s('s_waitcnt vmcnt(0)')
    s('v_cmp_ne_u64 vcc, s[76:77], v[6:7]')
    if sleep: s(f's_sleep {sleep}')
    s('s_cbranch_vccnz L_poll0')
    s('L_go0:')
    pt()
    for it in range(2):
        for i2, sm, fs in pre_p:
            if i2 == it:
                s(sm)
                for f in fs: s(f())
    s('s_sub_u32 s70, s78, 128')
    s('v_or_b32 v16, s60, v2\nv_min_u32 v16, 1, v16\nv_lshlrev_b32 v16, 30, v16')
    qpack(1)
    s('buffer_store_dwordx2 v[20:21], v16, s[12:15], s70 offen sc1')
    s(f's_add_u32 s78, s78, {64*fstride}')
    pv = [x for x in neg if x.kind == 'V']
    assert len(set(tuple(x.w) for x in pv)) == len(pv)
    dd = [x for x in neg if x.op == 'ds_read_b32']
    assert len(pv) + len(dd) + 16 == len(neg)
    for x in pv[:8] + dd[:8] + pv[8:] + dd[8:]: s(x)
    pt()
    stamp(0)
    for g in range(NG):
        t, i, w, x = mf[g]
        c = ACC(t, i)
        src = '0' if (x[0] == 0 and x[1] == 0 and x[2] == 0) else f'v[{c}:{c+3}]'
        A, B = areg[w], areg[('x',) + x]
        s(f'v_mfma_f32_16x16x32_bf16 v[{c}:{c+3}], {A[0]}[{A[1]}:{A[1]+3}], {B[0]}[{B[1]}:{B[1]+3}], {src}')
        if g in ticks: s(f's_memtime s[{60+2*ticks.index(g)}:{61+2*ticks.index(g)}]')
        if g == P2 - 1 and not ticks: stamp(1)
        if g == NG - 1 and not ticks: stamp(2)
        for f in gp.items(g): s(f())
    for g in sorted(gp.g):
        if g >= NG:
            for f in gp.items(g): s(f())
    stamp(3)
    st = s.finish(age_l=age_l)
    nfill = {}
    cur = None
    for x in st:
        if x.kind == 'M':
            if cur is not None: nfill[cur] = nfill.get(cur, 0) + 1
            cur = 0
        elif cur is not None: cur += 1
    print('  fillers/gap histogram', sorted(nfill.items()))
    body = render(st)
    if stamps:
        a = Asm()
        a('s_waitcnt vmcnt(0)')
        a('s_mov_b32 s79, 0')
        if pticks:
            for k in range(6): a(f's_mov_b32 s{60+2*k}, s{84+2*k}')
        for k in range(len(ticks)): a(f's_sub_u32 s{60+2*k}, s{60+2*k}, s82')
        stamp_end(a, 80, 84, 2, 8, nst=8+len(ticks), extra=[(96+k, 79) for k in range(4)] + [(60+2*k, 79) for k in range(len(ticks))])
        body += a.text()
    body += '''L_end:
    s_endpgm
L_slow1:
    s_mov_b32 s79, 0
L_poll1:
    buffer_load_dwordx2 v[6:7], v5, s[12:15], s78 offen sc1
    s_add_u32 s79, s79, 1
    s_cmp_gt_u32 s79, 20000
    s_cbranch_scc1 L_back1
    s_waitcnt vmcnt(0)
    v_cmp_ne_u64 vcc, s[76:77], v[6:7]
    s_cbranch_vccnz L_poll1
    s_branch L_back1
L_code_end:
'''
    return body

def build(**kw):
    return single(gemm_kernel(**kw), 256, 256, 163840, vgpr=512, accum=256, sgpr=102)
def kdict(**kw):
    return dict(name=KNAME, body=gemm_kernel(**kw), grid=256, block=256, lds=163840, vgpr=512, accum=256, sgpr=102)
if __name__ == '__main__':
    PT = dict(stamps=True, pticks=True, ticks=[-1,-2,-3,-4,-5,-6, 0, 895])
    open('v3.s', 'w').write(build())
    for fs in (8, 64, 128):
        open(f'v3_f{fs}.s', 'w').write(build(fstride=fs, **PT))
```

```python
import re
REG = re.compile(r'\b([vas])(\d+)\b|\b([vas])\[(\d+):(\d+)\]|\b(vcc|exec|m0|scc)\b')
def regs_of(tok):
    out = []
    for m in REG.finditer(tok):
        if m.group(1): out.append(m.group(1) + m.group(2))
        elif m.group(3): out += [m.group(3) + str(i) for i in range(int(m.group(4)), int(m.group(5)) + 1)]
        else: out.append(m.group(6))
    return out
class I:
    def __init__(self, text, defs=(), uses=(), nohoist=False):
        self.text = text.strip()
        self.nohoist = nohoist
        t = self.text.split(';')[0].strip()
        self.label = t.endswith(':') or t.startswith('.')
        op, _, rest = t.partition(' ')
        self.op = op
        ops = [o.strip() for o in rest.split(',')] if rest else []
        r = [regs_of(o) for o in ops]
        flat = lambda l: set(x for y in l for x in y)
        self.w = set(); self.r = set(); self.kind = 'S'; self.srcc = set(); self.stdata = set()
        if self.label: self.kind = 'L'
        elif op.startswith('v_mfma'):
            self.kind = 'M'; self.w = set(r[0]); self.r = flat(r[1:]); self.srcc = set(r[3])
        elif op.startswith('ds_'):
            self.kind = 'D'
            if op.startswith('ds_write') or op.startswith('ds_add'): self.r = flat(r)
            else: self.w = set(r[0]); self.r = flat(r[1:])
        elif op.startswith('buffer_') or op.startswith('global_'):
            self.kind = 'G'
            if op in ('buffer_inv', 'buffer_wbl2'): pass
            elif re.search(r'\blds\b', t): self.r = flat(r) | {'m0'}
            elif 'store' in op or 'atomic' in op:
                self.r = flat(r)
                di = 0 if op.startswith('buffer_') else 1
                if op.endswith('x4') or op.endswith('x3'): self.stdata = set(r[di])
                if 'atomic' in op and 'sc0' in t: self.w = set(r[0])
            else:
                self.w = set(r[0]); self.r = flat(r[1:])
                if 'd16' in op: self.r |= self.w
        elif op.startswith('v_'):
            self.kind = 'V'
            self.w = set(r[0]); self.r = flat(r[1:])
            if op.startswith('v_permlane') or op.startswith('v_swap'): self.w = flat(r); self.r = flat(r)
            if op.startswith('v_fmac') or op.startswith('v_writelane'): self.r |= self.w
            if '_co_' in op: self.w |= set(r[1])
        elif op.startswith('s_'):
            if op.startswith('s_cmp') or op.startswith('s_bitcmp'): self.r = flat(r); self.w = {'scc'}
            elif op in ('s_waitcnt', 's_nop', 's_barrier', 's_endpgm', 's_sleep', 's_setprio') or op.startswith('s_cbranch') or op == 's_branch': pass
            else:
                self.w = set(r[0]); self.r = flat(r[1:])
                if op.startswith('s_load') or op.startswith('s_mem') or op.startswith('s_buffer_load'): self.kind = 'K'
        self.defs = set(defs) | (self.w if self.kind in 'DG' else set())
        self.uses = set(uses) | self.r | self.w
    def __repr__(self): return self.text

def insert_waits(st, age_l=9, age_v=None):
    waits = {}
    mcount = [0] * (len(st) + 1)
    for p, ins in enumerate(st): mcount[p + 1] = mcount[p] + (ins.kind == 'M')
    def fillers(b):
        n = 0; k = b + 1
        while k < len(st) and st[k].kind != 'M': n += st[k].kind != 'L'; k += 1
        return n
    def solo(b):
        k = b + 1
        while k < len(st) and st[k].kind != 'M':
            if st[k].kind == 'G' or st[k].op == 's_barrier': return True
            k += 1
        return False
    for cls, key, mx, age in (('D', 'lgkm', 15, age_l), ('G', 'vm', 63, age_v)):
        issued = []
        retired = 0
        for p, ins in enumerate(st):
            if ins.op == 's_waitcnt':
                m = re.search(key + r'cnt\((\d+)\)', ins.text)
                if m: retired = max(retired, len(issued) - int(m.group(1)))
            need = -1
            for j in range(len(issued) - 1, retired - 1, -1):
                if st[issued[j]].defs & ins.uses: need = j; break
            if need >= 0:
                q = p
                if not ins.nohoist:
                    cands = []
                    b = p - 1
                    while b >= 0 and b > issued[need] and len(cands) < 4 and p - b <= 16 and (st[b].kind != 'L' or st[b].text.startswith('L_back')):
                        if st[b].kind == 'M':
                            if not cands and p - b > 5: break
                            if cands and mcount[b] - mcount[issued[need]] < 5: break
                            cands.append(b)
                        b -= 1
                    if cands:
                        q = cands[0] + 1
                        for c in cands:
                            if solo(c): continue
                            if (c + 1) in waits or fillers(c) < 3: q = c + 1; break
                n = sum(1 for x in issued[need + 1:] if x < q)
                if age is not None:
                    n = min(n, sum(1 for x in issued[need + 1:] if x < q and mcount[q] - mcount[x] < age))
                n = min(n, mx)
                d = waits.setdefault(q, {})
                d[key] = min(d.get(key, 99), n)
                cnt_q = sum(1 for x in issued if x < q)
                retired = max(retired, cnt_q - n)
            if ins.kind == cls: issued.append(p)
    out = []
    for p, ins in enumerate(st):
        if p in waits:
            d = waits[p]
            out.append(I('s_waitcnt ' + ' '.join(f'{k}cnt({v})' for k, v in sorted(d.items(), reverse=True))))
        out.append(ins)
    return out

def verify_waits(st):
    for cls, key in (('D', 'lgkm'), ('G', 'vm')):
        pend = []
        for ins in st:
            if ins.op == 's_waitcnt':
                m = re.search(key + r'cnt\((\d+)\)', ins.text)
                if m:
                    n = int(m.group(1)); pend = pend[len(pend) - n:] if n < len(pend) and n > 0 else ([] if n == 0 else pend)
            for pr in pend:
                assert not (pr.defs & ins.uses), f'uncovered: {pr.text} -> {ins.text}'
            if ins.kind == cls: pend.append(ins)

def states(ins):
    if ins.kind == 'L': return 0
    if ins.op == 's_nop': return int(ins.text.split()[1], 0) + 1
    return 1
def check_hazards(st, fix=False):
    out = []
    probs = []
    for ins in st:
        need = 0; why = ''
        dist = 0; nm = 0
        for pv in reversed(out):
            if dist >= 20: break
            req = 0
            vs = lambda s: set(x for x in s if x[0] in 'va' and x != 'vcc')
            ss = lambda s: set(x for x in s if x[0] == 's' and x != 'scc' or x == 'vcc')
            if pv.kind == 'V' and ins.kind == 'M' and vs(pv.w) & ins.r: req = 2
            if pv.kind == 'V' and pv.op.startswith('v_dot') and vs(pv.w) & (ins.r | ins.w): req = max(req, 3)
            if pv.kind == 'M':
                npass = 4 if '16x16x32' in pv.op else 8
                t = {4: (6, 8, 8, 3), 8: (10, 12, 12, 7)}[npass]
                if ins.kind == 'M':
                    if pv.w & (ins.r - ins.srcc): req = max(req, t[1])
                    elif pv.w & ins.srcc and pv.w != ins.srcc: req = max(req, t[0])
                    elif pv.w & ins.w and pv.w != ins.srcc: req = max(req, t[0])
                elif ins.kind in 'VDG' and pv.w & (ins.r | ins.w): req = max(req, t[2])
                if ins.kind == 'V' and pv.srcc & ins.w: req = max(req, t[3])
            if pv.kind == 'S' and 'm0' in pv.w and ins.kind == 'G' and 'm0' in ins.r: req = max(req, 1)
            if pv.stdata and pv.stdata & ins.w: req = max(req, 2)
            if pv.kind == 'V' and ss(pv.w):
                if ins.kind == 'G' and ss(pv.w) & ins.r: req = max(req, 5)
                if ins.kind == 'V' and ss(pv.w) & ins.r: req = max(req, 4 if 'lane' in ins.op else 2)
            if pv.kind == 'V' and ins.op in ('v_readfirstlane_b32', 'v_readlane_b32') and vs(pv.w) & ins.r: req = max(req, 1)
            if pv.kind == 'V' and ins.op.startswith('v_permlane') and vs(pv.w) & ins.r: req = max(req, 2)
            if pv.kind == 'V' and ins.kind == 'V' and ('dpp' in ins.text or 'row_' in ins.text or 'quad_perm' in ins.text) and vs(pv.w) & ins.r: req = max(req, 2)
            if pv.kind == 'V' and ins.kind == 'V' and ('sdwa' in pv.op or 'op_sel' in pv.text) and vs(pv.w) & (ins.r | ins.w): req = max(req, 1)
            d = dist + (nm if pv.kind == 'M' else 0)
            if req - d > need: need = req - d; why = f'{pv.text} -> {ins.text} req {req} dist {d}'
            dist += states(pv); nm += pv.kind == 'M'
        if need > 0:
            probs.append(why)
            if fix: out.append(I(f's_nop {need - 1}'))
        out.append(ins)
    return out, probs

class Stream:
    def __init__(self): self.l = []
    def __call__(self, s, **kw):
        if isinstance(s, I): self.l.append(s); return
        for x in s.split('\n'):
            if x.strip(): self.l.append(I(x, **kw))
    def finish(self, verbose=True, **kw):
        st = insert_waits(self.l, **kw)
        verify_waits(st)
        st, probs = check_hazards(st, fix=True)
        if verbose:
            for p in probs: print('  nop:', p)
        return st
def render(st):
    return '\n'.join(i.text if i.kind == 'L' else '    ' + i.text for i in st) + '\n'

class Gaps:
    def __init__(self, n):
        self.n = n; self.g = {}
    def at(self, g): return self.g.setdefault(g, {'s': [], 'v': [], 'e': []})
    def ok(self, g, k):
        a = self.at(g)
        v = [x[0] for x in a['v']]
        if k == 'S': return not (0 <= g < self.n) or (not a['s'] and not a['e'] and 'G' not in v)
        if k == 'E': return not a['s'] and not a['e'] and len(v) <= 1 and 'G' not in v and 'W' not in v
        if len(v) >= (1 if a['e'] else 2): return False
        if k == 'G' and (a['s'] or a['e']) and 0 <= g < self.n: return False
        if k == 'W' and a['e']: return False
        if not v: return True
        pr = {k, v[0]}
        if k == v[0]: return k in 'VD'
        if 'G' in pr: return pr <= set('GDQ')
        if 'W' in pr: return pr == set('WV') and self.wv
        return True
    wv = True
    def put(self, g, k, item, back=False, lo=None, odd=False):
        if odd and 0 <= g < self.n:
            want = {'G': (['Q'],), 'E': (['Q'],), 'D': (['G'], ['V'], []), 'V': (['Q'], ['D'], ['V'])}.get(k, ())
            for w in want:
                c = [h for h in (range(g, g - 7, -1) if back else range(g, g + 7)) if h % 2 and 0 <= h < self.n and self.ok(h, k) and [x[0] for x in self.at(h)['v']] == w]
                if c: g = c[0]; break
        while not self.ok(g, k) or (odd and g % 2 == 0):
            g += -1 if back else 1
            assert lo is None or g >= lo, 'no slot'
        self.at(g)[{'S': 's', 'E': 'e'}.get(k, 'v')].append((k, item)); return g
    def items(self, g):
        if g not in self.g: return []
        a = self.g[g]; v = a['v']
        o = {'D': 0, 'Q': 0, 'W': 0, 'G': 1, 'V': 2}
        return [x[1] for x in a['s']] + [x[1] for x in sorted(v, key=lambda x: o[x[0]])] + [x[1] for x in a['e']]

def linscan(ivs, pool, name='', verbose=True):
    free = list(pool); busy = []; out = {}; peak = 0
    for k, (a, b) in sorted(ivs.items(), key=lambda kv: kv[1][0]):
        for e in sorted(busy, key=lambda e: e[0]):
            if e[0] < a: busy.remove(e); free.append(e[1])
        assert free, f'pool {name} exhausted at {a}'
        r = free.pop(0); out[k] = r; busy.append((b, r)); peak = max(peak, len(busy))
    if verbose: print(f'  pool {name}: peak {peak}/{len(pool)}')
    return out

class It:
    def __init__(self, kind, fn, target, hard=None, preds=(), slack=24, name=''):
        self.kind = kind; self.fn = fn; self.target = target; self.hard = hard
        self.preds = [p if isinstance(p, tuple) else (p, 1) for p in preds if p is not None]
        self.slack = slack; self.gap = None; self.name = name; self.succ = []
class ListSched:
    def __init__(self, n, gsp=1, gpair='GDQ', wv=True, ban=''): self.ban = ban.split(','); self.n = n; self.its = []; self.g = {}; self.gsp = gsp; self.gpair = gpair; self.wv = wv
    def add(self, *a, **k):
        it = It(*a, **k); it.idx = len(self.its); self.its.append(it); return it
    def compat(self, cur, k):
        v = [x for x in cur if x in 'VDQWG']; sc = [x for x in cur if x in 'SBE']
        if k in 'SBE':
            if sc or 'G' in v: return False
            if k in 'EB': return len(v) <= 1 and 'W' not in v
            return True
        if len(v) >= (1 if ('E' in sc or 'B' in sc) else 2): return False
        if k == 'G' and sc: return False
        if k == 'W' and ('E' in sc or 'B' in sc): return False
        if not v: return True
        pr = {k, v[0]}
        if ''.join(sorted(k + v[0])) in self.ban: return False
        if k == v[0]: return k in 'VD'
        if 'G' in pr: return pr <= set(self.gpair)
        if 'W' in pr: return pr == set('WV') and self.wv
        return True
    def run(self, g0):
        its = self.its
        for it in its:
            for p, d in it.preds: p.succ.append((it, d))
        order = []; indeg = {it.idx: len(it.preds) for it in its}
        st = [it for it in its if not it.preds]
        while st:
            x = st.pop(); order.append(x)
            for y, d in x.succ:
                indeg[y.idx] -= 1
                if indeg[y.idx] == 0: st.append(y)
        assert len(order) == len(its), 'cycle'
        for it in order:
            it.est = max([it.target] + [p.est + d for p, d in it.preds])
        for it in reversed(order):
            it.dl = it.est + it.slack
            if it.hard is not None: it.dl = min(it.dl, it.hard)
            it.hdl = it.hard if it.hard is not None else 10**9
            for y, d in it.succ: it.hdl = min(it.hdl, y.hdl - max(d, 1) - (y.kind == 'G'))
            it.dl = min(it.dl, it.hdl)
        self.place(g0)
        bad = [(it.name, it.kind, it.gap, it.hard) for it in its if it.hard is not None and it.gap > getattr(it, 'must', it.hard + 4)]
        assert not bad, f'missed deadlines: {bad[:6]}'
    def place(self, g0):
        its = self.its
        todo = [it for it in its if it.gap is None]
        g = g0; lastG = -10**9
        while todo:
            cur = []; placed = []
            while True:
                rdy = [it for it in todo if it.gap is None and it.target <= g and all(p.gap is not None and p.gap + d <= g for p, d in it.preds)]
                rdy.sort(key=lambda it: (0, it.hdl, it.idx) if it.hdl - g <= 5 else (1, it.dl, it.idx))
                if g - lastG < self.gsp: rdy = [it for it in rdy if it.kind != 'G']
                elif not cur:
                    gs = [it for it in rdy if it.kind == 'G']
                    if gs and rdy[0].hdl > g + 2 and rdy[0].kind not in 'B': rdy = gs
                pick = next((it for it in rdy if self.compat(cur, it.kind)), None)
                if pick is None: break
                pick.gap = g; cur.append(pick.kind); placed.append(pick)
                if pick.kind == 'G': lastG = g
            self.g[g] = placed
            todo = [it for it in todo if it.gap is None]
            g += 1
    def items(self, g):
        o = {'S': 0, 'B': 0, 'D': 1, 'Q': 1, 'W': 1, 'G': 2, 'V': 3, 'E': 4}
        return sorted(self.g.get(g, []), key=lambda it: o[it.kind])

class ListSched2(ListSched):
    def __init__(self, n, gsp=4, ban='', ovf=6, wv=True, fifo=None):
        super().__init__(n, gsp, 'G', wv, ban); self.ovf = ovf
        self.fifo = fifo
    def comp(self, it, g):
        ls, lf, ts, tf, lmax, mg, _ = self.fifo
        return max(g + (ls if it.slow else lf), self.last + it.lines * (ts if it.slow else tf), self.hbm + getattr(it, 'bw', 0))
    def place(self, g0):
        todo = [it for it in self.its if it.gap is None]
        g = g0; lastG = -10**9; plan = None; self.novf = 0; self.lost = 0
        key = lambda it: (0, it.hdl, it.idx) if it.hdl - g <= 5 else ((1, it.hdl, it.idx) if it.hdl - g <= 30 and it.dl <= g + 1 else (2, it.dl, it.idx))
        locks = [it for it in self.its if hasattr(it, 'rel')]
        def ready(at):
            busy = any(it.gap is not None and (it.rel.gap is None or it.rel.gap >= at) for it in locks)
            return sorted((it for it in todo if it.gap is None and it.target <= at and all(p.gap is not None and done(p, d, it) <= at for p, d in it.preds)
                           and not (busy and hasattr(it, 'rel')) and not (self.fifo and hasattr(it, 'lines') and not turn(it, at))), key=key)
        def turn(it, at):
            if self.fifo[4] > 30:
                if self.comp(it, at) - at > self.fifo[4]: return False
            elif sum(1 for f in self.fins if f > at) >= self.fifo[4]: return False
            for y in todo:
                if y.gap is None and hasattr(y, 'lines') and (y.due, y.idx) < (it.due, it.idx) and y.target <= at + 4 and \
                   all(p.kind == 'S' or (p.gap is not None and p.gap + d <= at + 4) for p, d in y.preds): return False
            return True
        def done(p, d, it):
            if self.fifo and d >= 30 and hasattr(p, 'fin'): return min(p.fin + self.fifo[5], max(it.hdl - 1, p.gap + 20))
            return p.gap + d
        if self.fifo:
            self.fins = list(self.fifo[6]) if isinstance(self.fifo[6], tuple) else [self.fifo[6]]
            self.last = self.fins[-1]; self.hbm = -10**6
            key0 = key
            key = lambda it: (1, it.due, it.idx) if hasattr(it, 'lines') else key0(it)
        while todo:
            cur = []; placed = []
            if hasattr(self, 'gsp2') and g >= self.gsp2[0]: self.gsp = self.gsp2[1]
            inl = 0 <= g < self.n
            if plan is not None:
                plan.gap = g; placed.append(plan); lastG = g
                if self.fifo and hasattr(plan, 'lines'):
                    fin = self.comp(plan, g)
                    if getattr(plan, 'bw', 0): self.hbm = max(g + self.fifo[0], self.hbm + plan.bw)
                    self.last = plan.fin = fin; self.fins.append(fin)
                plan = None
            else:
                r = ready(g)
                bar = [it for it in r if it.kind == 'B']
                if bar and (r[0].hdl > g or r[0].kind == 'B'):
                    bar[0].gap = g; placed.append(bar[0])
                    nxt = [it for it in ready(g + 1) if it.kind == 'G']
                    if nxt and g + 1 - lastG >= self.gsp: plan = nxt[0]
                else:
                    nxt = [it for it in ready(g + 1) if it.kind == 'G'] if g + 1 - lastG >= self.gsp else []
                    urgent = sum(1 for it in ready(g + 1) if it.kind in 'VDQ' and it.hdl <= g + 2)
                    back = sum(1 for it in ready(g + 1) if it.kind in 'VDQE' and it.hdl - g <= 30 and it.dl <= g - 1)
                    prep = bool(nxt) and (urgent <= 1 or nxt[0].hdl <= g + 1) and (back <= 2 or nxt[0].hdl - g <= 30)
                    soon = not prep and not urgent and g + 2 - lastG >= self.gsp and any(it.kind == 'G' for it in ready(g + 2))
                    while True:
                        rr = [it for it in ready(g) if it.kind not in 'GB']
                        if soon and inl:
                            nl = sum(1 for it in ready(g + 1) if it.kind in 'DQ')
                            if nl <= 2 and any(it.kind == 'V' for it in rr): rr = [it for it in rr if it.kind not in 'DQ']
                        if prep:
                            nv = [k for k in cur if k in 'VDQW']
                            if nv: rr = [it for it in rr if it.kind in 'SE' or (it.kind != 'V' and 'V' not in nv)]
                            elif any(it.kind in 'DQ' for it in rr): rr = [it for it in rr if it.kind != 'V']
                        pick = next((it for it in rr if self.compat(cur, it.kind)), None)
                        if pick is None: break
                        pick.gap = g; cur.append(pick.kind); placed.append(pick)
                    if prep: plan = nxt[0]
                    elif inl and not any(k in 'SEW' for k in cur) and len(cur) == 2:
                        late = [it for it in ready(g) if it.kind in 'VDQ' and (it.dl <= g - self.ovf or it.hdl <= g + 1) and (it.kind == 'V' or ('V' in cur and not (it.kind == 'Q' and 'Q' in cur)))]
                        if late and cur != ['V', 'V'] or [it for it in late if it.kind in 'DQ']:
                            x = late[0] if cur != ['V', 'V'] else [it for it in late if it.kind in 'DQ'][0]
                            x.gap = g; placed.append(x); self.novf += 1
                    if plan is None and not any(k == 'V' for k in cur[1:]) and not (len([k for k in cur if k in 'VDQW']) == 2 and 'V' in cur):
                        nxt = [it for it in ready(g + 1) if it.kind == 'G'] if g + 1 - lastG >= self.gsp else []
                        if nxt and len(placed) == len(cur): plan = nxt[0]
            if self.fifo and getattr(self, 'shift', False):
                for it in placed:
                    dl_ = max([0] + [p.fin - g for p, d in it.preds if d >= 30 and hasattr(p, 'fin')]) + getattr(it, 'dur', 0)
                    if dl_ > 0:
                        self.lost += dl_; self.last -= dl_; self.hbm -= dl_; self.fins = [f - dl_ for f in self.fins]
                        for y in self.its:
                            if hasattr(y, 'fin') and y.fin > g: y.fin = max(g, y.fin - dl_)
            self.g[g] = placed
            todo = [it for it in todo if it.gap is None]
            g += 1
```

```python
import sys, subprocess, re
sys.path.insert(0, 'tools')
from asmlib import *
from sched import *

M, K, N = 2048, 1024, 3584
QROW = N * 4
RS = 464
RING = 65536
NIT = 8
PROW = 1024
PNT = 128 * PROW
EOFF = 16 * PNT
WSUSE = EOFF + 16 * 128
TAGC = 0x9e3779b9
SPIN = 4096

def sizes(st):
    txt = '.amdgcn_target "amdgcn-amd-amdhsa--gfx950"\n.text\n'
    for x in st:
        if x.kind == 'L': continue
        t = x.text
        if x.op.startswith('s_cbranch') or x.op == 's_branch': t = x.op + ' 0'
        txt += t + '\n'
    open('_sz.s', 'w').write(txt)
    r = subprocess.run(['llvm-mc', '-triple=amdgcn-amd-amdhsa', '-mcpu=gfx950', '-show-encoding', '_sz.s'], capture_output=True, text=True)
    assert r.returncode == 0, r.stderr[:500]
    enc = [len(m.split(',')) for m in re.findall(r'encoding: \[(.*?)\]', r.stdout)]
    out = []; k = 0
    for x in st:
        if x.kind == 'L': out.append(0)
        else: out.append(enc[k]); k += 1
    assert k == len(enc)
    return out

def gemm_kernel(skew=0, stamps=False, pticks=None, ticks=(), rt=False, dg='', pause=None, swave=0, test_help=False, verbose=True,
                aux_out='sc1', xm=8, LA_P=110, LAT_P=60, g_p=(0, 1, 60, 110), LA_X=220, LAT_X=60, dma_sp=4, dma1=0,
                rB=(2, 4, 60), rvis=(85, 140), gK=130, gKh=160, pads=True, nf6=1, gbm=16, lsl=30, split=(0, 1, 2), ybar=32, chk0all=False,
                bar_at=60, bar0=76, gsp=4, wv=True, ban='', dhard=7, ovf=12, age_l=9, DL=4, bw=5, lateset=115, g_sc=470,
                pre='dn', layout='XLDSGKTWBQPdE', roles=('XLDSGKTWBQPdE', 'LSXDGTKBQPdE', 'LSDGTXBQPdKE', 'LSDGTXBQPdKE'), clk=4, warm={0: 0},
                fifo=(52, 32, 0.23, 0.15, 75, 4, 30), lk0=0, xdue=15, pdue=30, rdue=0, rbw=0, xds=0, grp=(1,1,1,1,1,1,1,1), tsp=4, rl=7, knee=None, ovf1=None, shift=True, snake=True, n5=7, plate=1, ychk=24, kprim=0, xf=0, b7=False, rot=None, cpf2=None, aux_q='nt', aux_x=''):
    S = 2; dnop = None; aux_last = None
    kap = tuple(range(8))
    ACC = lambda t, i: 128 + (t * 8 + i) * 4
    slot = lambda it: (it + 1) % 3
    P1 = NIT - S
    mf = []
    def own(it, b, t, i, rev=False):
        for st in ((1, 0) if rev else (0, 1)): mf.append((t, i, (it, b, st, t), (it, b, i), 4*st))
    def shr(it, b, i): mf.append((3, i, (it, b, 0, 3), (it, b, i), 2))
    for it in range(P1):
        for b in range(2):
            nt_ = n5 if it == 5 else 8
            for t in range(3):
                for i in range(nt_): own(it, b, t, i, snake and i % 2)
            for i in range(nt_):
                if it in split: shr(it, b, i)
                elif b == 0:
                    for b2 in ((1, 0) if snake and i % 2 else (0, 1)): shr(it, b2, i)
    P2 = len(mf)
    def chain(t, i, its):
        for it in its:
            for b in range(2): shr(it, b, i) if t == 3 else own(it, b, t, i)
    for t in (3, 0, 1, 2):
        for i in range(nf6): chain(t, i, (6,))
    for i in range(8):
        for t in (3, 0, 1, 2): chain(t, i, (7,) if i < nf6 else (6, 7) if i < n5 else (5, 6, 7))
    NG = len(mf)
    assert NG == 896
    wfirst, wlast, xfirst, xlast, alast, afirst = {}, {}, {}, {}, {}, {}
    for g, (t, i, w, x, o) in enumerate(mf):
        wfirst.setdefault(w, g); wlast[w] = g; xlast[x] = g; alast[(t, i)] = g; afirst.setdefault((t, i), g)
        for st in range(2):
            if o == 2 or o == 4*st: xfirst.setdefault((x[0], x[1], st, x[2]), g)
    L = ListSched2(NG, gsp, ban, ovf, wv, fifo)
    areg = {}; qreg = {}; treg = {}
    xiv = {}; xreg = {}; aiv = {}; qiv = {}; tiv = {}
    def live(d, k, *its): d.setdefault(k, []).extend(its)
    PRE = -1000
    vis = {}; bar = {}
    for it in range(P1):
        bar[it] = vis[it + 1, 0] = vis[it + 1, 1] = L.add('B', lambda it=it: I('s_barrier', uses={f'q{it}', f'dma{it+1}0'} | (set() if it + 1 in split else {f'dma{it+1}1'})),
                                                         112*it + (bar0 if it == 0 else bar_at if it < 5 else bar_at * n5 // 8), slack=2, name=f'B{it}')
    if b7: bar[6] = vis[7, 0] = vis[7, 1] = L.add('B', lambda: I('s_barrier', uses={'dma70', 'dma71'}), P2 + 14*nf6 - 26, slack=2, name='B7')
    else:
        bar[6] = vis[7, 0] = vis[7, 1] = bar[5]; bar[5].target += 12
        bar[5].fn = lambda: I('s_barrier', uses={'q5', 'dma60', 'dma61', 'dma70', 'dma71'})
    for it in split: vis[it, 1] = L.add('B', lambda it=it: I('s_barrier', uses={f'dma{it}1'}), 112*it + ybar, slack=2, name=f'Y{it}')
    def qread(x):
        it, b, st, i = x
        sl = slot(it)
        base = 40 + (2 if sl == 2 else 0) + st
        off = (0 if sl == 2 else sl*32768) + b*16384 + i * 2048
        k = (it, b, i)
        return lambda: I(f'ds_read_b128 a[{xreg[k]+4*st}:{xreg[k]+4*st+3}], v{base} offset:{off}', defs={f'q{it}'})
    def addq(x, nom):
        it = L.add('Q', qread(x), nom, hard=xfirst[x] - dhard, preds=[(vis[x[:2]], 0)] if x[:2] in vis else [], slack=6, name=f'Q{x}')
        live(xiv, (x[0], x[1], x[3]), it, xlast[(x[0], x[1], x[3])])
        return it
    for it in range(P1):
        for b in range(2):
            for k in range(2*(n5 if it == 5 else 8)):
                q = addq((it, b, k % 2, k // 2), 112*it + ((ybar + 1 + 2*k if it in split else 1 + 3*k) if b else -47 + 3*k))
                if b: bar[it].preds.append((q, 8))
    xs = sorted([x for x in xfirst if xfirst[x] >= P2], key=lambda x: xfirst[x])
    for k, x in enumerate(xs): addq(x, min(P2 - 34 + int(3.5*k), xfirst[x] - 12))
    def dma(it):
        out = []
        for half in range(2):
            for j in range(4):
                if rot is None:
                    m0 = f's_add_u32 m0, s57, {slot(it)*32768 + half*16384}' if j == 0 else None
                    so = f's_add_u32 s{(56, 3)[half]}, s{(55, 69)[half]}, {256*it}' if j == 0 else None
                    out.append((m0, so, I(f'buffer_load_dwordx4 v{36+j}, s[8:11], s{(56, 3)[half]} offen offset:{j*1024} {aux_x} lds', defs={f'dma{it}{half}'})))
                else:
                    pr_, sp_ = j // 2, it in split
                    m0 = f's_xor_b32 m0, s{57 if sp_ else 60}, {(RING + slot(it)*32768) ^ half*16384 ^ pr_*2048}' if j % 2 == 0 else None
                    so = f's_xor_b32 s{(56, 3)[pr_]}, s{55 if sp_ else 69}, {256*it ^ half*128 ^ pr_*32768}' if j % 2 == 0 else None
                    out.append((m0, so, I(f'buffer_load_dwordx4 v{36+j%2}, s[8:11], s{(56, 3)[pr_]} offen offset:{j%2*1024} lds', defs={f'dma{it}{half}'})))
        return out
    hist = []
    npre = (8 + dma1) if 'd' in layout else 4
    for it in range(NIT):
        for k, (m0, so, d) in enumerate(dma(it)):
            if 8*it + k < npre: continue
            vb = vis[it, k // 4]
            t = max(vis[it, 0].target - LA_X, 3) + dma_sp*k if it > 1 else 1
            pr = [(hist[-1], 2)] if hist else []
            if it > 2: pr.append((bar[it - 3], 1))
            if m0: pr.append(L.add('S', lambda m0=m0: I(m0), max(t - 3, 0), preds=hist[-1:], slack=4))
            if so: pr.append(L.add('S', lambda so=so: I(so), max(t - 6, 0), preds=(hist[-5:-4] if len(hist) >= 5 else []) if rot is None else hist[-3:-2], slack=4))
            x = L.add('G', lambda d=d: d, t, preds=pr, slack=50 if it > 1 else 0, name=f'dma{it}.{k}')
            x.lines = 32; x.slow = 2*it >= xf; x.due = vb.target + (xdue if it < 6 or (b7 and it < 7) else -50 if it == 6 else 0) - (xds if it == 2 else 0)*(7 - k)
            vb.preds.append((x, LAT_X))
            hist.append(x)
    if cpf2:
        x = L.add('G', lambda: I('buffer_load_dword v1, v45, s[48:51], 0 offen offset:256'), cpf2, slack=0, name='C'); x.lines = 4; x.slow = False; x.due = cpf2
    def own_load(r): return f'buffer_load_dwordx3 v[{r}:{r+2}], v18, s[4:7], s61 offen {aux_q}'
    def sh_load(r, a=19): return f'buffer_load_dword v{r+3}, v{a}, s[4:7], s61 offen {aux_q}'
    def pack(q):
        return [f'v_or_b32 v{q[0]+3}, s47, v{q[0]+3}'] + [f'v_lshl_or_b32 v{q[0]+c}, v{q[e]+c}, {4*e}, v{q[0]+c}' for e in range(1, 8) for c in range(4 if e < 4 else 3)]
    def own_store(r): return f'buffer_store_dwordx4 v[{r}:{r+3}], v20, s[12:15], s62 offen sc1'
    rows = [(e, sh) for e in range(8) for sh in range(2 if e < 4 else 1)]
    g_r, sp, lat = rB
    ld = {}; prev = None
    for k, (e, sh) in enumerate(rows):
        pr = [prev]
        if e and not sh: pr.append(L.add('S', lambda: I(f's_add_u32 s61, s61, {QROW}'), 0, preds=[prev], slack=2))
        prev = x = ld[e, sh] = L.add('G', lambda e=e, sh=sh: I((sh_load if sh else own_load)(qreg[('B', e)])), g_r + sp*k, preds=pr, slack=25)
        x.lines = 8 if sh else 24; x.slow = True; x.due = gKh - rdue*(7 - e); x.bw = rbw / 3 if sh else rbw
    if gK:
        rdone = L.add('B', lambda: [I(y) for y in pack([qreg[('B', e)] for e in range(8)]) + [own_store(qreg[('B', 0)])]] + (late_blk if lateset == 'block' else []),
                      gK, hard=gKh, preds=[(y, lat) for y in ld.values()], slack=0)
        rdone.must = 10**6; rdone.dur = 9 + (13 if lateset == 'block' else 0)
        for (e, sh), y in ld.items(): live(qiv, ('B', e), y, rdone)
    else:
        x = None; seq = [(0, 1)] + [(e, int(c == 3)) for e in range(1, 8) for c in range(4 if e < 4 else 3)]
        for k, key in enumerate(seq):
            x = L.add('V', lambda k=k: I(pack([qreg[('B', e)] for e in range(8)])[k]), 0, preds=[(x, 0) if x else None, (ld[key], lat)], slack=10)
            live(qiv, ('B', key[0]), ld[key], x)
        rdone = L.add('G', lambda: I(own_store(qreg[('B', 0)])), 0, preds=[x], slack=2)
        live(qiv, ('B', 0), ld[0, 0], rdone)
    lk = [[w, q, None, 10**6, None] for w in sorted(wfirst, key=lambda w: (w[0], wfirst[w])) for q in range(4)]
    gb = max(wfirst.values()) - gbm
    nj = nh = 10**6
    for e in reversed(lk):
        w = e[0]
        nh = e[4] = min(wfirst[w] - dhard, nh - 1) if w[0] < P1 else wfirst[w] - dhard - (3 - e[1])
        if w[0] >= P1: nh = 10**6
        else: nj = min(wfirst[w] - 10 - w[2], nj - (2 if w[0] < 5 else n5 / 4)); e[3] = int(nj + 1000.99) - 1000
    j0 = sum(1 for e in lk if e[3] < lk0)
    pts = [(j0, lk0)] + [(j_, g_) for g_, j_ in (knee or [])] + [(len(lk) - 1, gb)]
    for j, e in enumerate(lk):
        if j < j0: e[2] = e[3]; continue
        (ja, ga), (jb, gb_) = next((a, b) for a, b in zip(pts, pts[1:]) if j <= b[0])
        e[2] = min(e[3], int(ga + (j - ja) * (gb_ - ga) / (jb - ja)))
    qk = lambda c, st: ('c', c[0], c[1], st)
    cfirst = {}; cjit = {}
    for w, q, g, jit, _ in lk: cfirst[w[:2]] = min(cfirst.get(w[:2], 10**9), g); cjit[w[:2]] = min(cjit.get(w[:2], 10**9), jit)
    sreg = ['0', 's40', 's41', 's42', 's43', 's44', 's45', 's72']
    def cload(c, st):
        r = qreg[qk(c, st)]
        return f'buffer_load_dwordx4 v[{r}:{r+3}], v{(32, 33, 34, 44)[2*c[1] + st]}, s[12:15], {sreg[c[0]]} offen sc1'
    def chk(c, t): return [f'v_bitop3_b32 v{t}, v{qreg[qk(c, 0)]+3}, v{qreg[qk(c, 1)]+3}, s76 bitop3:0x7e', f'v_cmp_lt_u32 vcc, 0xffff, v{t}']
    corder = sorted(cfirst)
    cbr = {}; sset = {it: L.add('S', lambda it=it: I(f's_mov_b32 {sreg[it]}, {16*PROW*it}'), 12*(it - 1), slack=3) for it in range(1, NIT)}
    for n, c in enumerate(corder):
        lds = []
        for st in range(2):
            if c == (0, 0) or (c == (0, 1) and ('p' in layout or plate)):
                live(qiv, qk(c, st), PRE + 2*n + st); continue
            t = max(cfirst[c] - LA_P + 3*st, 1, g_p[c[0]] if c[0] < 2 else g_p[2 + c[1]])
            pr = [sset.get(c[0])] + ([(rdone, rvis[c[1]])] if c[0] >= 4 else [])
            x = L.add('G', lambda c=c, st=st: I(cload(c, st)), t, preds=pr, slack=10, name=f'P{c}{st}')
            x.lines = 32; x.slow = False; x.due = min(cjit[c], cfirst[c] + pdue) - 10
            lds.append((x, LAT_P)); live(qiv, qk(c, st), x)
        nm = f'{c[0]}_{c[1]}'
        if c == (0, 0) or (c == (0, 1) and chk0all): continue
        x = L.add('V', lambda c=c: I(chk(c, treg[c])[0]), max(cfirst[c] - 13, ychk), preds=lds, slack=4)
        y = L.add('V', lambda c=c: I(chk(c, treg[c])[1]), 0, preds=[x], slack=2)
        live(tiv, c, x, y)
        cbr[c] = y.rel = L.add('E', lambda nm=nm: [I(f's_cbranch_vccnz L_slow{nm}'), I(f'L_back{nm}:')], 0, preds=[(y, 2)], slack=1)
    wo = lambda w: (('w', w[0], 3), 4*w[1]) if w[3] == 3 else (('w', w[0], w[1], w[3]), 4*w[2])
    dall = []
    for n, (w, q, g, jit, hard) in enumerate(lk):
        sl = max(3, min(lsl if not ovf1 or g > ovf1[0] else ovf1[1], jit - g + 3, (gb - g) // 3))
        st, sel = (q // 2, q % 2) if w[3] == 3 else (w[2], q)
        v = L.add('V', lambda n=n, w=w, st=st, sel=sel: I(f'v_perm_b32 v{treg[n]}, v{qreg[qk(w, st)] + w[3]}, v35, s{36+sel}'), g - 2, preds=[cbr.get(w[:2])], slack=sl)
        d = L.add('D', lambda n=n, w=w, q=q: I(f'ds_read_b32 a{areg[w]+q}, v{treg[n]}', defs={'lut'}), g, hard=hard, preds=[v], slack=3, name=f'D{w}{q}')
        d.must = wfirst[w] - 3; dall.append(d)
        live(tiv, n, v, d); live(xiv, wo(w)[0], d, wlast[w]); live(qiv, qk(w, st), v)
    STG = 1024; TB = 16*RS; EXB = STG + 7*TB
    xo_ = lambda i: (i - 3)*2048 if i >= 3 else RING + 16384 - EXB + i*2048
    assert EXB % 8 == 0 and EXB + 5*2048 <= RING and n5 >= 4
    so_ = lambda i: (i - 1)*TB if i else RING - STG
    s = Stream()
    s('s_mul_i32 s66, s63, 96\ns_lshl_b32 s67, s65, 5\ns_lshl_b32 s70, s64, 2\ns_add_u32 s67, s67, s70\ns_add_u32 s67, s67, 384')
    s('s_mul_i32 s71, s59, 448')
    s('s_add_u32 s70, s66, s71\nv_mad_u32_u24 v22, v3, 24, s70')
    s('s_add_u32 s70, s67, s71\nv_lshl_add_u32 v23, v3, 3, s70')
    s(f's_mov_b32 s34, {N*2}\ns_mov_b32 s35, 0x20000\ns_mov_b32 s26, 256\ns_mov_b32 s27, 0x20000\ns_lshl_b32 s77, s59, 4')
    s(f's_mov_b32 s18, {M*N*2}\ns_mov_b32 s19, 0x20000')
    s(f's_sub_u32 s70, {STG}, s71\nv_mul_u32_u24 v16, {RS}, v4')
    s('v_add3_u32 v26, v22, v16, s70\nv_add3_u32 v28, v23, v16, s70')
    s(f'v_lshlrev_b32 v29, 3, v0\nv_xor_b32 v30, 512, v29\nv_add_u32 v29, {EXB}, v29\nv_add_u32 v30, {EXB}, v30')
    s('v_mul_u32_u24 v16, 2341, v2\nv_lshrrev_b32 v16, 16, v16')
    s(f's_mul_i32 s73, s63, {4*RS}\ns_add_u32 s73, s73, {STG}')
    s('v_add_lshl_u32 v24, v2, v16, 4\nv_add_u32 v24, s73, v24')
    s(f's_lshl_b32 s74, s58, 7\ns_lshl_b32 s75, s63, 2\ns_add_u32 s74, s74, s75\ns_mul_i32 s74, s74, {N*2}\ns_add_u32 s74, s74, s71')
    s(f'v_mul_u32_u24 v17, {N*2 - 448}, v16\nv_lshl_add_u32 v25, v2, 4, v17')
    s('v_lshrrev_b32 v16, 1, v16\nv_lshlrev_b32 v16, 30, v16\nv_add3_u32 v25, v25, v16, s74')
    assert RS - 448 == 16 and all((l * 2341) >> 16 == l // 28 for l in range(64))
    late_l = s.l
    x = None
    for k, y in enumerate(late_l if lateset == 'loop' else []):
        x = L.add(y.kind, lambda y=y: y, 2*k, preds=[(x, 0 if x.kind == 'S' and y.kind == 'V' or x.kind == y.kind == 'V' else 1)] if x else [], slack=30)
    late_blk = late_l
    if isinstance(lateset, int): L.add('B', lambda: late_blk, lateset, slack=0).dur = 13
    if lateset != 'pre': late_l = []
    gs0 = g_sc
    s0 = L.add('G', lambda: I(f'buffer_load_dwordx4 v[{qreg["sp0"]}:{qreg["sp0"]+3}], v22, s[32:35], 0 offen'), gs0)
    s1 = L.add('G', lambda: I(f'buffer_load_dwordx2 v[{qreg["sp1"]}:{qreg["sp1"]+1}], v22, s[32:35], 0 offen offset:16'), gs0 + 6)
    s2 = L.add('G', lambda: I(f'buffer_load_dword v{qreg["sp1"]+2}, v23, s[32:35], 0 offen'), gs0 + 12)
    live(qiv, 'sp0', s0); live(qiv, 'sp1', s1, s2)
    spk = lambda d: qreg['sp0'] + d if d < 4 else qreg['sp1'] + d - 4
    sc = {}
    for t in (3, 0, 1, 2):
        for r in range(4 if t < 3 else 2):
            j = 3*r + t if t < 3 else 12 + r
            f = (lambda t=t, r=r, j=j: I(f'v_lshlrev_b32 v{qreg[("sc",t)]+r}, 16, v{spk(j//2)}')) if j % 2 == 0 else \
                (lambda t=t, r=r, j=j: I(f'v_and_b32 v{qreg[("sc",t)]+r}, 0xffff0000, v{spk(j//2)}'))
            sc[t, r] = L.add('V', f, alast[(t, 0)] - 40, hard=alast[(t, 0)] + DL - 1, preds=[(s0, 50), (s1, 50), (s2, 50)], slack=40)
            live(qiv, ('sc', t), sc[t, r], 10**6); live(qiv, 'sp0', sc[t, r]); live(qiv, 'sp1', sc[t, r])
    x = L.add('V', lambda: I('v_mov_b32 v8, 1'), gb + 6, preds=list(cbr.values()))
    x = L.add('V', lambda: I('v_min_u32 v9, 1, v0'), P2, preds=[(x, 0)])
    x = L.add('V', lambda: I('v_lshlrev_b32 v9, 30, v9'), P2, preds=[(x, 0)])
    x = L.add('G', lambda: I('buffer_atomic_add v8, v9, s[24:27], s77 offen sc0 sc1'), P2, preds=[x] + list(sc.values()) + [bar[6]])
    for t in ('v_xor_b32 v8, 1, v8' if 'a' in dg else 'v_xor_b32 v8, 15, v8', 'v_or_b32 v8, v8, v0', 'v_min_u32 v8, 1, v8', 'v_lshlrev_b32 v8, 30, v8', 'v_mov_b32 v9, s76'):
        x = L.add('V', lambda t=t: I(t), NG - 22, preds=[(x, 0)])
    L.add('G', lambda: I('buffer_store_dword v9, v8, s[12:15], s78 offen sc1'), 0, preds=[x])
    def mulq(t, i, pr=()):
        c = ACC(t, i)
        return [L.add('V', lambda r=r: I(f'v_mul_f32 v{c+r}, v{c+r}, v{qreg[("sc",t)]+r}'), alast[(t, i)] + DL, preds=[(sc[t, r], 0)] + ([(pr[r], 0)] if pr else []), slack=8 if t < 2 else 2)
                for r in range(4 if t < 3 else 2)]
    lastst = [None, None]
    lutbar = 1 if grp[1] == 1 else 0
    def e2(i, bar, n):
        rds = [L.add('Q', lambda k=('e2', i, j), j=j: I(f'ds_read_b128 v[{qreg[k]}:{qreg[k]+3}], v24 offset:{so_(i) + 2*j*RS}'), 0, preds=[(bar, 2*tsp*n)], slack=j) for j in range(2)]
        for j in range(2):
            k = ('e2', i, j); so = 66 + j
            sm = L.add('S', lambda j=j, so=so: I(f's_mov_b32 s{so}, {(16*i + 2*j)*N*2}'), P2 + j, preds=[lastst[j]], slack=2)
            x = L.add('G', lambda k=k, so=so: I(f'buffer_store_dwordx4 v[{qreg[k]}:{qreg[k]+3}], v25, s[16:19], s{so} offen {aux_out}'), 0,
                      preds=[(rds[j], rl), sm, (lastst[1 - j], tsp) if lastst[1 - j] else None], slack=1)
            live(qiv, k, rds[j], x); lastst[j] = x
    assert sum(grp) == 8 and grp[0] == 1
    stg = []; bq = []; i0 = 0; prevg = []
    for n in grp:
        tiles = list(range(i0, i0 + n)); i0 += n
        ex = [L.add('W', lambda c=ACC(3, i), i=i: I(f'ds_write_b64 v29, v[{c+2}:{c+3}] offset:{xo_(i)}', defs={f'ex{i}'}), alast[(3, i)] + DL, preds=[bar[5] if i < 3 else tbl_free], slack=3) for i in tiles]
        lut = tiles[0] == lutbar
        b_ = L.add('B', lambda tiles=tiles, prevg=prevg, lut=lut: I('s_barrier', uses={f'ex{i}' for i in tiles} | {f'stg{i}' for i in prevg} | ({'lut'} if lut else set())), 0,
                   preds=[(x, bw) for x in ex] + stg + ([(d, bw) for d in dall] if lut else []), slack=0)
        bq.append(b_)
        if lut: tbl_free = b_
        for m_, i in enumerate(prevg): e2(i, b_, m_)
        stg = []
        for i in tiles:
            c = ACC(3, i); k = ('ex', i)
            gx = L.add('D', lambda i=i, k=k: I(f'ds_read_b64 v[{qreg[k]}:{qreg[k]+1}], v30 offset:{xo_(i)}'), 0, preds=[(b_, 0)], slack=3)
            ad = [L.add('V', lambda r=r, c=c, k=k: I(f'v_add_f32 v{c+r}, v{c+r}, v{qreg[k]+r}'), 0, preds=[(gx, rl)], slack=6) for r in range(2)]
            mu = mulq(3, i, ad)
            cv = L.add('V', lambda c=c, k=k: I(f'v_cvt_pk_bf16_f32 v{qreg[k]}, v{c}, v{c+1}'), 0, preds=[(y, 0) for y in mu], slack=6)
            x = L.add('W', lambda i=i, k=k: I(f'ds_write_b32 v28, v{qreg[k]} offset:{so_(i)}', defs={f'stg{i}'}), 0, preds=[cv], slack=6)
            live(qiv, k, gx, x)
            stg.append((x, bw))
            mu = {t: mulq(t, i) for t in range(3)}
            cvs = []
            for u in range(3):
                k = ('cv', i, u // 2)
                cvs.append([L.add('V', lambda k=k, u=u, v=v, i=i: I(f'v_cvt_pk_bf16_f32 v{qreg[k]+2*(u%2)+v}, v{ACC((4*u+2*v)%3, i) + (4*u+2*v)//3}, v{ACC((4*u+2*v+1)%3, i) + (4*u+2*v+1)//3}'),
                            0, preds=[(mu[j % 3][j // 3], 0) for j in (4*u + 2*v, 4*u + 2*v + 1)], slack=3 + u) for v in range(2)])
            for u in range(3):
                k = ('cv', i, u // 2)
                x = L.add('W', lambda k=k, u=u, i=i: I(f'ds_write_b64 v26, v[{qreg[k]+2*(u%2)}:{qreg[k]+2*(u%2)+1}] offset:{so_(i) + 8*u}', defs={f'stg{i}'}), 0,
                          preds=(cvs[u] if i != 7 else cvs[0] + cvs[1] + cvs[2]) + [tbl_free if i else bar[5]], slack=2)
                live(qiv, k, x, *cvs[u]); stg.append((x, bw))
        prevg = tiles
    bfin = L.add('B', lambda: I('s_barrier', uses={f'stg{i}' for i in prevg}), 0, preds=stg, slack=0)
    for i in prevg: e2(i, bfin, 0)
    L.gsp2 = (P2, min(tsp, gsp)); L.shift = shift
    L.run(-60)
    if verbose: print('  barriers', sorted(set(v.gap for v in vis.values())), 'tiles', [b.gap for b in bq], 'round store', rdone.gap, 'overflow', L.novf, 'lost', int(L.lost))
    if verbose and fifo: print('  G:', ' '.join(f'{x.name or "r"}@{x.gap}>{int(x.fin)}' for x in sorted((x for x in L.its if hasattr(x, 'fin')), key=lambda x: x.gap)).replace('(', '').replace(')', '').replace(', ', ''))
    def iv(d, ext=0):
        o = {}
        for k, v in d.items():
            gs = [x.gap if isinstance(x, It) else x for x in v]
            o[k] = (min(gs), max(gs) + ext)
        return o
    xreg.update(linscan(iv(xiv), [8*k for k in range(32)], 'octets', verbose))
    areg.update({w: xreg[wo(w)[0]] + wo(w)[1] for w in wfirst})
    qreg.update(linscan(iv(qiv, 1), [64 + 4*k for k in range(16)] + [48, 52], 'quads', verbose))
    treg.update(linscan(iv(tiv), list(range(56, 64)), 'temps', verbose))
    def skip(x, g=0):
        if g >= P2:
            if '1' in dg and x.op == 's_barrier': return True
            if '2' in dg and x.op.startswith('ds_write'): return True
            if '3' in dg and x.op == 'buffer_store_dwordx4': return True
            if '4' in dg and x.op in ('v_mul_f32', 'v_add_f32', 'v_cvt_pk_bf16_f32'): return True
            if '5' in dg and x.op.startswith('ds_read') and x.text.split()[1][0] == 'v': return True
        if 'e' in dg and x.op == 'buffer_store_dword': return True
        if 'a' in dg and x.op == 'buffer_atomic_add': return True
        if 's' in dg and 'store' in x.op and ('s62' in x.text or 's60' in x.text): return True
        if 'c' in dg and x.op in ('v_bitop3_b32', 'v_cmp_lt_u32', 's_cbranch_vccnz'): return True
        if 'l' in dg and 's[4:7]' in x.text: return True
        if 'x' in dg and x.text.endswith('lds'): return True
        if 'y' in dg and 'load' in x.op and 's[12:15]' in x.text: return True
        if 'b' in dg and x.op == 's_barrier': return True
        return False
    def emit(s, g):
        for it in L.items(g):
            r = it.fn()
            for x in (r if isinstance(r, list) else [r]):
                if skip(x, g): continue
                if 'p' in dg and 'load' in x.op: x = I(x.text.replace(' sc1', ''), defs=x.defs, uses=x.uses)
                s(x)

    s = Stream()
    def stamp(k):
        if stamps: s(f's_waitcnt lgkmcnt(0)\ns_memtime s[100:101]\ns_waitcnt lgkmcnt(0)\ns_sub_u32 s{(96, 97, 53, 54)[k]}, s100, s82')
    s('s_cmp_ge_u32 s2, 256\ns_cbranch_scc1 L_end')
    if skew:
        s('s_memrealtime s[80:81]\ns_waitcnt lgkmcnt(0)\ns_lshr_b32 s82, s80, 12\ns_lshl_b32 s82, s82, 3\ns_and_b32 s83, s2, 7\ns_add_u32 s82, s82, s83')
        s(f's_mul_i32 s82, s82, 0x9e3779b1\ns_lshr_b32 s83, s82, 15\ns_xor_b32 s82, s82, s83\ns_mul_i32 s82, s82, 0x85ebca6b\ns_mul_hi_u32 s82, s82, {skew}\ns_add_u32 s82, s82, s80')
        s('L_skew:\ns_memrealtime s[80:81]\ns_waitcnt lgkmcnt(0)\ns_cmp_lt_u32 s80, s82\ns_cbranch_scc1 L_skew')
    if stamps: s('s_memrealtime s[80:81]\ns_memtime s[82:83]')
    s('s_load_dwordx2 s[4:5], s[0:1], 8\ns_load_dwordx2 s[12:13], s[0:1], 48\ns_load_dwordx2 s[8:9], s[0:1], 0\ns_load_dwordx2 s[28:29], s[0:1], 16')
    s(f's_getpc_b64 s[48:49]\ns_mov_b32 s50, CODE_BYTES\ns_mov_b32 s51, 0x20000')
    s('s_lshr_b32 s61, s2, 3\nv_lshl_add_u32 v46, v0, 5, s61\nv_lshlrev_b32 v46, 7, v46')
    s('buffer_load_dword v1, v46, s[48:51], 0 offen offset:256')
    lm = {2: 1, 4: 2, 8: 3, 16: 4}[xm]
    gm = 16 // xm; lgm = 4 - lm
    s('v_lshrrev_b32 v5, 6, v0\nv_and_b32 v2, 63, v0')
    s('s_and_b32 s60, s2, 7')
    s('v_readfirstlane_b32 s63, v5')
    s(f's_and_b32 s58, s60, {gm-1}\ns_lshl_b32 s58, s58, {lm}\ns_and_b32 s62, s61, {xm-1}\ns_add_u32 s58, s58, s62')
    s(f's_lshr_b32 s59, s60, {lgm}\ns_lshl_b32 s59, s59, {5-lm}\ns_lshr_b32 s62, s61, {lm}\ns_add_u32 s59, s59, s62')
    s('v_mul_u32_u24 v18, 12, v2')
    s('s_lshl_b32 s60, s63, 4\ns_add_u32 s60, s60, s58')
    s(f's_mul_i32 s61, s60, {8*QROW}\ns_mul_i32 s79, s59, 896\ns_add_u32 s61, s61, s79')
    s(f's_mov_b32 s6, {K*QROW}\ns_mov_b32 s7, 0x20000')
    s(f's_lshl_b32 s78, s59, 7\ns_add_u32 s78, s78, {EOFF + 12}')
    s('v_and_b32 v4, 15, v2\nv_lshrrev_b32 v3, 4, v2')
    s('v_and_b32 v12, 1, v3\nv_lshlrev_b32 v13, 1, v12\nv_xor_b32 v13, v13, v4\nv_lshrrev_b32 v19, 1, v3\nv_lshl_add_u32 v19, v19, 4, v13')
    s(f's_bfe_u32 s70, s58, 0x10002\ns_xor_b32 s70, s70, 1\nv_xor_b32 v12, s70, v12\nv_mul_u32_u24 v12, {QROW}, v12\nv_add_lshl_u32 v19, v19, v12, 2\nv_add_u32 v19, 768, v19')
    progs = list(dict.fromkeys(roles)); rid = [progs.index(r) for r in roles]
    s(f's_mov_b32 s46, {rid[3]}')
    for w_ in range(3):
        if rid[w_] != rid[3]: s(f's_cmp_lg_u32 s63, {w_}\ns_cbranch_scc1 L_role{w_}\ns_mov_b32 s46, {rid[w_]}\nL_role{w_}:')
    nst = 0 if test_help or 's' in dg else 1
    neg = Stream()
    for g in range(-60, 0): emit(neg, g)
    neg = neg.l
    def set_d(s):
        s('v_lshlrev_b32 v16, 1, v4\nv_lshrrev_b32 v17, 4, v0\nv_lshlrev_b32 v17, 1, v17')
        s(f's_mov_b32 s30, 32\ns_mov_b32 s31, 0x20000')
        s('v_lshrrev_b32 v6, 3, v2\nv_and_b32 v7, 7, v2\nv_xor_b32 v13, v7, v3')
        s('s_lshl_b32 s70, s63, 5\nv_add_lshl_u32 v12, v6, s70, 11')
        s('v_lshl_add_u32 v36, v13, 4, v12\nv_xor_b32 v37, 64, v36')
        s(f'v_add_u32 v37, {8*2048-1024}, v37')
        if rot is None: s(f'v_add_u32 v38, {2*(8*2048-1024)}, v36\nv_add_u32 v39, {2*(8*2048-1024)}, v37')
        s(f's_mov_b32 s10, {M*K*2}\ns_mov_b32 s11, 0x20000')
        s('s_lshl_b32 s55, s58, 18\ns_and_b32 s71, s58, 8\ns_lshl_b32 s70, s71, 4\ns_add_u32 s55, s55, s70\ns_lshl_b32 s57, s63, 12')
        if rot is None: s(f's_xor_b32 s69, s55, 128\ns_add_u32 s57, s57, {RING}')
        else: s(f's_and_b32 s70, s59, {rot & 1}\ns_lshl_b32 s71, s70, 15\ns_xor_b32 s55, s55, s71\ns_lshl_b32 s71, s70, 11\ns_xor_b32 s57, s57, s71')
    def set_n(s):
        s(f's_mov_b32 s14, {WSUSE}\ns_mov_b32 s15, 0x20000')
        s('s_lshl_b32 s68, s59, 17\ns_lshl_b32 s62, s60, 10\ns_add_u32 s62, s62, s68\nv_lshlrev_b32 v20, 4, v2')
    def set_s(s):
        s('s_and_b32 s64, s63, 1\ns_lshr_b32 s65, s63, 1')
        s('s_and_b32 s70, s58, 8\ns_lshl_b32 s70, s70, 10\ns_lshl_b32 s71, s64, 12\ns_add_u32 s70, s70, s71\ns_lshl_b32 s71, s63, 8\ns_add_u32 s70, s70, s71\ns_add_u32 s70, s70, s68')
        s('v_lshl_add_u32 v32, v4, 4, s70\nv_lshl_add_u32 v32, v3, 10, v32\nv_xor_b32 v33, 4096, v32\nv_xor_b32 v34, 8192, v32\nv_xor_b32 v44, 12288, v32')
        for b in range(4): s(f's_mov_b32 s{36+b}, {0x0c0c0000 | ((4+b) << 8)}')
        s('v_and_b32 v35, 31, v2\nv_lshlrev_b32 v35, 2, v35')
        s(f's_lshl_b32 s70, s64, 6\ns_add_u32 s70, s70, {RING}')
        s('v_lshrrev_b32 v12, 1, v4\nv_xor_b32 v12, v12, v3\nv_lshlrev_b32 v12, 4, v12\nv_lshl_add_u32 v12, v4, 7, v12')
        s('v_xor_b32 v40, s70, v12\nv_xor_b32 v41, 64, v40\nv_add_u32 v42, 65536, v40\nv_add_u32 v43, 65536, v41')
        s('s_mov_b32 s52, 0')
        if cpf2: s('v_add_u32 v45, 16384, v46')
        if rot is not None: s(f's_and_b32 s70, s59, {rot & 2}\ns_lshl_b32 s71, s70, 6\ns_xor_b32 s69, s55, s71\ns_lshl_b32 s71, s70, 13\ns_xor_b32 s60, s57, s71')
    sets = {'d': set_d, 'n': set_n, 's': set_s}
    for ch in pre: sets[ch](s)
    s('s_waitcnt lgkmcnt(0)')
    s('s_load_dword s76, s[12:13], s78')
    def pt(s, ch):
        if pticks and ch in pticks: s(f's_memtime s[{84+2*pticks.index(ch)}:{85+2*pticks.index(ch)}]')
    pt(s, '0')
    def emit_dma(s, it, a=0, b=8):
        for m0, so, d in dma(it)[a:b]:
            if m0: s(m0)
            if so: s(so)
            s(d)
    def block(ch):
        s = Stream()
        if ch == 'X':
            for e, sh in rows:
                s((sh_load if sh else own_load)(128 + 4*e))
                if sh or e > 3: s(f's_add_u32 s61, s61, {QROW if e < 7 else (512 - 7)*QROW}')
        if ch == 'L':
            if 'd' not in pre: set_d(s)
            s('buffer_load_ushort v16, v16, s[28:31], 0 offen\nbuffer_load_ushort v17, v17, s[28:31], 0 offen')
        if ch == 'D': emit_dma(s, 0, 0, 4)
        if ch == 'd': emit_dma(s, 0, 4, 8)
        if ch == 'S':
            s('s_load_dwordx2 s[32:33], s[0:1], 24\ns_load_dwordx2 s[16:17], s[0:1], 32\ns_load_dwordx2 s[24:25], s[0:1], 40')
            for c_ in 'ns':
                if c_ not in pre: sets[c_](s)
            for y in late_l: s(I(y.text.replace('v16', 'v12').replace('v17', 'v13')))
            s('v_lshlrev_b32 v8, 4, v7\nv_lshl_add_u32 v8, v0, 8, v8')
            for j in range(1, 8): s(f'v_xor_b32 v{8 + j}, {16*j}, v8')
        if ch == 'G': s(f's_waitcnt lgkmcnt(0)\ns_add_u32 s76, s76, {TAGC}\ns_and_b32 s47, s76, 0xffff0000')
        if ch == 'K':
            for x in pack([128 + 4*e for e in range(8)]): s(x)
            if nst: s(own_store(128))
            s(f's_add_u32 s62, s62, {64*PROW}')
        if ch == 'T':
            for r in range(56, 60): s(f'v_lshl_or_b32 v{r}, v17, 16, v16')
            for j in range(8): s(f'ds_write_b128 v{8 + j}, v[56:59]', defs={'tbl'})
        if ch == 'W' and pads: s('L_WARM:')
        if ch == 'B': s('s_barrier', uses={'tbl', 'dma00'} | (set() if 0 in split else {'dma01'}))
        if ch in 'Pp':
            for st in range(2): s(cload((0, int(ch == 'p')), st))
        if ch == 'Q':
            for x in neg:
                if x.op == 'ds_read_b128': s(x)
        if ch == 'F':
            s('s_lshl_b32 s70, s59, 3\ns_lshl_b32 s71, s58, 7\ns_add_u32 s70, s70, s71\ns_lshl_b32 s70, s70, 11')
            s(f'v_lshlrev_b32 v27, 7, v7\nv_lshl_add_u32 v27, v6, 11, v27\nv_add_u32 v21, {8 - xf}, v7\nv_lshrrev_b32 v21, 3, v21\nv_lshl_add_u32 v27, v21, 30, v27')
            s('buffer_load_dword v27, v27, s[8:11], s70 offen')
        if ch == 'E': emit_dma(s, 1, 0, dma1)
        pt(s, ch)
        return s.l
    blocks = {ch: block(ch) for ch in layout}
    head = s.l
    s = Stream()
    s('L_chk0:')
    for x in chk((0, 0), 12): s(x)
    s('s_cbranch_vccnz L_retry0')
    pt(s, 'C')
    if plate == 1:
        for st in range(2): s(cload((0, 1), st))
    pv = [x for x in neg if x.kind == 'V']
    dd = [x for x in neg if x.op == 'ds_read_b32']
    assert len(pv) + len(dd) + 16 == len(neg)
    assert len(set(tuple(x.w) for x in pv[:8])) == 8 and len(set(tuple(x.w) for x in pv[8:])) == len(pv) - 8
    for x in pv[:8] + dd[:8] + pv[8:] + dd[8:]: s(x)
    if plate == 2:
        for st in range(2): s(cload((0, 1), st))
    if chk0all:
        for x in chk((0, 1), 12): s(x)
    stamp(0)
    s('s_cbranch_vccz L_main')
    s('L_retry0:')
    n0 = len(s.l)
    if stamps: s('s_or_b32 s52, s52, 0x10000')
    s(f's_add_u32 s52, s52, 1\ns_and_b32 s23, s52, {SPIN - 1}\ns_cbranch_scc1 L_retry0b\ns_mov_b32 s22, {kap[0]}\ns_call_b64 s[20:21], L_help\nL_retry0b:')
    for k in range(4 if 'p' in layout else 2): s(cload((0, k // 2), k % 2))
    s('s_waitcnt vmcnt(0) lgkmcnt(0)\ns_branch L_chk0')
    for x in s.l[n0:]: x.role = (2,)
    if pads: s('.p2align 12')
    s('L_main:')
    for g in range(NG):
        t, i, w, x, o_ = mf[g]
        c = ACC(t, i)
        src = '0' if g == afirst[(t, i)] else f'v[{c}:{c+3}]'
        A, B = areg[w], xreg[x] + o_
        s(f'v_mfma_f32_16x16x32_bf16 v[{c}:{c+3}], a[{A}:{A+3}], a[{B}:{B+3}], {src}')
        if g in ticks: s(f's_mem{"real" if rt else ""}time s[{84+2*ticks.index(g)}:{85+2*ticks.index(g)}]')
        if g == P2 - 1 and stamps: s('s_memrealtime s[14:15]'.replace('14:15', '98:99'))
        if g == P2 - 1 and not ticks: stamp(1)
        if g == NG - 1 and not ticks: stamp(2)
        emit(s, g)
        if pause and g in pause:
            for _ in range(pause[g] // 64): s('s_nop 15')
        if dnop and dnop[0] <= g < dnop[1] and g % dnop[2] == 0: s('s_nop 7')
    for g in range(NG, max(L.g) + 1): emit(s, g)
    stamp(3)
    tail = s.l
    hot = [x for x in tail if not hasattr(x, 'role')]
    need = {}
    for r, prog in enumerate(progs):
        lin = list(head)
        for ch in prog: lin += [I(f's_waitcnt vmcnt({clk})')] if ch == 'c' else blocks[ch]
        lin += hot
        own = set(map(id, lin)); out = insert_waits(lin, age_l=age_l); verify_waits(out)
        for a, b in zip(out, out[1:]):
            if id(a) not in own:
                m1 = re.search(r'vmcnt\((\d+)\)', a.text); m2 = re.search(r'lgkmcnt\((\d+)\)', a.text)
                need.setdefault(id(b), {})[r] = (int(m1.group(1)) if m1 else 99, int(m2.group(1)) if m2 else 99)
    nlab = [0]
    def with_waits(l, users, inloop=False, prim=None):
        o = []
        for x in l:
            if x.text == 'L_main:': inloop = True
            d = need.get(id(x))
            if d:
                lg = min(v[1] for v in d.values()); vm = {r: d.get(r, (99, 99))[0] for r in users}
                if inloop: vm = {r: min(vm.values()) for r in users}
                if prim is not None: vm = {r: vm[prim] for r in users}
                lv = sorted(set(vm.values()), reverse=True)
                t = ' '.join(([f'vmcnt({lv[0]})'] if lv[0] < 99 else []) + ([f'lgkmcnt({lg})'] if lg < 99 else []))
                if t: o.append(I('s_waitcnt ' + t))
                if len(lv) > 1:
                    nlab[0] += 1
                    for hi, lo in zip(lv, lv[1:]):
                        for r in users:
                            if vm[r] == hi: o += [I(f's_cmp_eq_u32 s46, {r}'), I(f's_cbranch_scc1 L_rw{nlab[0]}')]
                        y = I(f's_waitcnt vmcnt({lo})'); y.only = [r for r in users if vm[r] <= lo]; o.append(y)
                    o.append(I(f'L_rw{nlab[0]}:'))
            o.append(x)
        return o
    allr = list(range(len(progs)))
    def edge(frm, nxt_layout):
        o = []; tg = {}
        for r, prog in enumerate(progs):
            if frm is not None and frm not in prog: continue
            k = 0 if frm is None else prog.index(frm) + 1
            w_ = None
            if k < len(prog) and prog[k] == 'c': w_ = clk; k += 1
            to = prog[k] if k < len(prog) else '$'
            if to == 'K' and r != kprim:
                w_ = min(v[r][0] for n, x in enumerate(blocks['K']) for v in [need.get(id(x), {})] if r in v) if any(r in need.get(id(x), {}) for x in blocks['K']) else w_
            tg[r] = (to, w_)
        rs = sorted(tg, key=lambda r: tg[r][0] == nxt_layout)
        for n, r in enumerate(rs):
            to, w_ = tg[r]; last = n == len(rs) - 1 or all(tg[q] == tg[r] for q in rs[n:])
            lbl = 'L_chk0' if to == '$' else f'L_{to}'
            if last:
                if w_ is not None: y = I(f's_waitcnt vmcnt({w_})'); y.only = rs[n:]; o.append(y)
                if to != nxt_layout: o.append(I(f's_branch {lbl}'))
                break
            if w_ is None: o += [I(f's_cmp_eq_u32 s46, {r}'), I(f's_cbranch_scc1 {lbl}')]
            else:
                nlab[0] += 1; y = I(f's_waitcnt vmcnt({w_})'); y.only = [r]
                o += [I(f's_cmp_lg_u32 s46, {r}'), I(f's_cbranch_scc1 L_ed{nlab[0]}'), y, I(f's_branch {lbl}'), I(f'L_ed{nlab[0]}:')]
        return o
    fin = {None: with_waits(head, allr) + edge(None, layout[0])}
    for n, ch in enumerate(layout):
        users = [r for r in allr if ch in progs[r]]
        fin[ch] = [I(f'L_{ch}:')] + with_waits(blocks[ch], users, prim=kprim if ch == 'K' else None) + edge(ch, layout[n + 1] if n + 1 < len(layout) else '$')
    ftail = with_waits(tail, allr)
    for r, prog in enumerate(progs):
        lin = fin[None] + [x for ch in prog if ch != 'c' for x in fin[ch]] + [x for x in ftail if not hasattr(x, 'role')]
        lin = [x for x in lin if r in getattr(x, 'only', [r])]
        verify_waits(lin)
    st = fin[None] + [x for ch in layout for x in fin[ch]] + ftail
    st, probs = check_hazards(st, fix=True)
    if verbose:
        for p in probs: print('  nop:', p)
    lab = {x.text[:-1]: k for k, x in enumerate(st) if x.kind == 'L' and x.text.endswith(':')}
    m0 = lab['L_main'] + 1
    sz = sizes(st[m0:])
    tot = sum(sz)
    if pads:
        pos = [m0]; addr = 4; nxt = 4096; best = None; fill = 0
        for k, x in enumerate(st[m0:]):
            if addr >= nxt and (x.kind == 'M' or fill > 6) and x.kind != 'L':
                if addr <= nxt + 56:
                    if best is None or fill < best[0]: best = (fill, m0 + k)
            if addr > nxt + 56:
                assert best, 'no pad position'
                pos.append(best[1]); addr += 4; nxt += 4096; best = None
            fill = 0 if x.kind == 'M' else fill + (x.kind != 'L')
            addr += sz[k]
        if addr + 4 > nxt: pos.append(best[1] if best else len(st))
        npad = len(pos)
        assert npad <= 6
        first = warm
        for n, p in reversed(list(enumerate(pos))):
            st[p:p] = [I(f'L_pad{n}:'), I(f's_cbranch_execz {"L_warmed" if n + 1 in first.values() or n == npad - 1 else f"L_pad{n+1}"}')]
        w = [I('s_mov_b64 exec, 0')]
        for wv_, k in first.items():
            if k < npad: w += [I(f's_cmp_eq_u32 s63, {wv_}'), I(f's_cbranch_scc1 L_pad{k}')]
        w += [I('L_warmed:'), I('s_mov_b64 exec, -1')]
        st[lab['L_WARM']:lab['L_WARM'] + 1] = w
    nfill = {}; cur = None
    for x in st:
        if x.kind == 'M':
            if cur is not None: nfill[cur] = nfill.get(cur, 0) + 1
            cur = 0
        elif cur is not None and x.kind != 'L': cur += 1
    if verbose: print('  fillers/gap histogram', sorted(nfill.items()), 'loop bytes', tot)
    body = render(st).replace('CODE_BYTES', f'L_code_end-{KNAME}-256')
    if stamps:
        a = Asm()
        a('s_memrealtime s[78:79]\ns_waitcnt vmcnt(0) lgkmcnt(0)\ns_sub_u32 s78, s78, s80')
        a('s_sub_u32 s98, s98, s80')
        ex = [(96, 79), (54, 79)]
        if pticks:
            for k in range(6): a(f's_sub_u32 s{40+k}, s{84+2*k}, s82')
            ex += [(40+k, 79) for k in range(6)]
        for k in range(len(ticks)): a(f's_sub_u32 s{40+k}, s{84+2*k}, s{80 if rt else 82}')
        ex += [(40+k, 79) for k in range(len(ticks))]
        if not ticks: ex += [(97, 79), (53, 79)]
        ex += [(98, 79), (78, 79), (52, 79)]
        a('s_mov_b32 s79, 0')
        if swave: a(f'v_xor_b32 v0, {64*swave}, v0')
        stamp_end(a, 80, 64, 2, 8, nst=4+len(ex), extra=ex)
        body += a.text()
        if verbose: print('  nstamp', 4 + len(ex))
    body += 'L_end:\n    s_endpgm\n'
    o = Stream()
    for c in corder:
        if c not in cbr: continue
        nm = f'{c[0]}_{c[1]}'
        o(f'L_slow{nm}:')
        if stamps: o(f's_or_b32 s52, s52, {1 << (16 + c[0])}')
        o(f's_mov_b32 s22, {c[0]}\ns_call_b64 s[20:21], L_tick')
        o(cload(c, 0)); o(cload(c, 1))
        o('s_waitcnt vmcnt(0)')
        for x in chk(c, 12): o(x)
        o(f's_cbranch_vccnz L_slow{nm}\ns_branch L_back{nm}')
    o('L_tick:')
    o(f's_add_u32 s52, s52, 1\ns_and_b32 s23, s52, {SPIN - 1}\ns_cbranch_scc1 L_tick_ret')
    o('L_help:\ns_mov_b32 s53, s61\ns_mov_b32 s54, s62')
    o(f's_mul_i32 s61, s22, {128*QROW}\ns_add_u32 s61, s61, s79')
    o('s_lshl_b32 s62, s22, 14\ns_add_u32 s62, s62, s68')
    o('s_mov_b32 s22, 0')
    o('L_help_row:')
    o('v_mov_b32 v21, v19\ns_xor_b32 s23, s22, s58\ns_bitcmp0_b32 s23, 2\ns_cbranch_scc1 L_help_same')
    o(f'v_add_u32 v12, {4*QROW}, v19\nv_subrev_u32 v13, {4*QROW}, v19\nv_min_u32 v21, v12, v13\nL_help_same:')
    o('v_mov_b32 v8, 0\nv_mov_b32 v9, 0\nv_mov_b32 v10, 0\nv_mov_b32 v11, s47\ns_mov_b32 s23, 0')
    o('L_help_e:')
    o('v_mov_b32 v15, 0')
    o(own_load(12))
    o('s_cmp_ge_u32 s23, 16\ns_cbranch_scc1 L_help_own')
    o(sh_load(12, 21))
    o('L_help_own:\ns_waitcnt vmcnt(0)')
    for c in range(4): o(f'v_lshl_or_b32 v{8+c}, v{12+c}, s23, v{8+c}')
    o(f's_add_u32 s61, s61, {QROW}')
    o('s_add_u32 s23, s23, 4\ns_cmp_lt_u32 s23, 32\ns_cbranch_scc1 L_help_e')
    o(own_store(8))
    o(f's_add_u32 s62, s62, {PROW}')
    o('s_waitcnt vmcnt(0)')
    o('s_add_u32 s22, s22, 1\ns_cmp_lt_u32 s22, 16\ns_cbranch_scc1 L_help_row')
    o('s_mov_b32 s61, s53\ns_mov_b32 s62, s54')
    o('L_tick_ret:\ns_setpc_b64 s[20:21]')
    body += render(o.finish(verbose=False)) + 'L_code_end:\n'
    return body

NOTES = """;
; Weights: the 16 workgroups of a column group pack the int32 codes cooperatively, 8 codes per word, into d_ws (write-through stores).
;   granules of earlier launches never match. Consumers check the tags of every load and re-load until they match; a wave that waits too
;   long packs the missing K block itself, so no residency or placement is assumed. The last workgroup of a group to count itself in
; x tile: LDS-DMA ring of three K128 stages (XOR-swizzled). The last K blocks run row tile by row tile with the weights held in registers,
;   so scaling, bf16 conversion, LDS staging and the output stores overlap the MFMAs.
; L_pad*: branch pads at the 4 KiB code pages, visited once with EXEC = 0 (branches only) to get those lines into the instruction cache.
"""
def build(**kw):
    return single(gemm_kernel(**kw), 256, 256, 163840, vgpr=512, accum=256, sgpr=102, notes=NOTES)
def kdict(**kw):
    return dict(name=KNAME, body=gemm_kernel(**kw), grid=256, block=256, lds=163840, vgpr=512, accum=256, sgpr=102)
if __name__ == '__main__':
    open('standalone__normalfloat_lut_af4__prompt.s', 'w').write(build())
```

```python
import re
REG = re.compile(r'\b([vas])(\d+)\b|\b([vas])\[(\d+):(\d+)\]|\b(vcc|exec|m0|scc)\b')
def regs_of(tok):
    out = []
    for m in REG.finditer(tok):
        if m.group(1): out.append(m.group(1) + m.group(2))
        elif m.group(3): out += [m.group(3) + str(i) for i in range(int(m.group(4)), int(m.group(5)) + 1)]
        else: out.append(m.group(6))
    return out
class I:
    def __init__(self, text, defs=(), uses=(), nohoist=False):
        self.text = text.strip()
        self.nohoist = nohoist
        t = self.text.split(';')[0].strip()
        self.label = t.endswith(':') or t.startswith('.')
        op, _, rest = t.partition(' ')
        self.op = op
        ops = [o.strip() for o in rest.split(',')] if rest else []
        r = [regs_of(o) for o in ops]
        flat = lambda l: set(x for y in l for x in y)
        self.w = set(); self.r = set(); self.kind = 'S'; self.srcc = set(); self.stdata = set()
        if self.label: self.kind = 'L'
        elif op.startswith('v_mfma'):
            self.kind = 'M'; self.w = set(r[0]); self.r = flat(r[1:]); self.srcc = set(r[3])
        elif op.startswith('ds_'):
            self.kind = 'D'
            if op.startswith('ds_write') or op.startswith('ds_add'): self.r = flat(r) | ({'m0'} if 'addtid' in op else set())
            else: self.w = set(r[0]); self.r = flat(r[1:])
        elif op.startswith('buffer_') or op.startswith('global_'):
            self.kind = 'G'
            if op in ('buffer_inv', 'buffer_wbl2'): pass
            elif re.search(r'\blds\b', t): self.r = flat(r) | {'m0'}
            elif 'store' in op or 'atomic' in op:
                self.r = flat(r)
                di = 0 if op.startswith('buffer_') else 1
                if op.endswith('x4') or op.endswith('x3'): self.stdata = set(r[di])
                if 'atomic' in op and 'sc0' in t: self.w = set(r[0])
            else:
                self.w = set(r[0]); self.r = flat(r[1:])
                if 'd16' in op: self.r |= self.w
        elif op.startswith('v_'):
            self.kind = 'V'
            self.w = set(r[0]); self.r = flat(r[1:])
            if op.startswith('v_permlane') or op.startswith('v_swap'): self.w = flat(r); self.r = flat(r)
            if op.startswith('v_fmac') or op.startswith('v_writelane') or 'UNUSED_PRESERVE' in t: self.r |= self.w
            if '_co_' in op: self.w |= set(r[1])
        elif op.startswith('s_'):
            if op.startswith('s_cmp') or op.startswith('s_bitcmp'): self.r = flat(r); self.w = {'scc'}
            elif op in ('s_waitcnt', 's_nop', 's_barrier', 's_endpgm', 's_sleep', 's_setprio') or op.startswith('s_cbranch') or op == 's_branch': pass
            else:
                self.w = set(r[0]); self.r = flat(r[1:])
                if op.startswith('s_load') or op.startswith('s_mem') or op.startswith('s_buffer_load'): self.kind = 'K'
        self.defs = set(defs) | (self.w if self.kind in 'DG' else set())
        self.uses = set(uses) | self.r | self.w
    def __repr__(self): return self.text

def insert_waits(st, age_l=9, age_v=None, hmin=5):
    waits = {}
    mcount = [0] * (len(st) + 1)
    for p, ins in enumerate(st): mcount[p + 1] = mcount[p] + (ins.kind == 'M')
    def fillers(b):
        n = 0; k = b + 1
        while k < len(st) and st[k].kind != 'M': n += st[k].kind != 'L'; k += 1
        return n
    def solo(b):
        k = b + 1
        while k < len(st) and st[k].kind != 'M':
            if st[k].kind == 'G' or st[k].op == 's_barrier': return True
            k += 1
        return False
    for cls, key, mx, age in (('D', 'lgkm', 15, age_l), ('G', 'vm', 63, age_v)):
        issued = []
        retired = 0
        for p, ins in enumerate(st):
            if ins.op == 's_waitcnt':
                m = re.search(key + r'cnt\((\d+)\)', ins.text)
                if m: retired = max(retired, len(issued) - int(m.group(1)))
            need = -1
            for j in range(len(issued) - 1, retired - 1, -1):
                if st[issued[j]].defs & ins.uses: need = j; break
            if need >= 0:
                q = p
                if not ins.nohoist:
                    cands = []
                    b = p - 1
                    while b >= 0 and b > issued[need] and len(cands) < 4 and p - b <= 16 and (st[b].kind != 'L' or st[b].text.startswith(('L_back', 'L_syb'))):
                        if st[b].kind == 'M':
                            if not cands and p - b > 5: break
                            if cands and mcount[b] - mcount[issued[need]] < hmin: break
                            cands.append(b)
                        b -= 1
                    if cands:
                        q = cands[0] + 1
                        for c in cands:
                            if solo(c): continue
                            if (c + 1) in waits or fillers(c) < 3: q = c + 1; break
                n = sum(1 for x in issued[need + 1:] if x < q)
                if age is not None:
                    n = min(n, sum(1 for x in issued[need + 1:] if x < q and mcount[q] - mcount[x] < age))
                n = min(n, mx)
                d = waits.setdefault(q, {})
                d[key] = min(d.get(key, 99), n)
                cnt_q = sum(1 for x in issued if x < q)
                retired = max(retired, cnt_q - n)
            if ins.kind == cls: issued.append(p)
    out = []
    for p, ins in enumerate(st):
        if p in waits:
            d = waits[p]
            out.append(I('s_waitcnt ' + ' '.join(f'{k}cnt({v})' for k, v in sorted(d.items(), reverse=True))))
        out.append(ins)
    return out

def verify_waits(st):
    for cls, key in (('D', 'lgkm'), ('G', 'vm')):
        pend = []
        for ins in st:
            if ins.op == 's_waitcnt':
                m = re.search(key + r'cnt\((\d+)\)', ins.text)
                if m:
                    n = int(m.group(1)); pend = pend[len(pend) - n:] if n < len(pend) and n > 0 else ([] if n == 0 else pend)
            for pr in pend:
                assert not (pr.defs & ins.uses), f'uncovered: {pr.text} -> {ins.text}'
            if ins.kind == cls: pend.append(ins)

def states(ins):
    if ins.kind == 'L': return 0
    if ins.op == 's_nop': return int(ins.text.split()[1], 0) + 1
    return 1
def check_hazards(st, fix=False):
    out = []
    probs = []
    for ins in st:
        need = 0; why = ''
        dist = 0; nm = 0
        for pv in reversed(out):
            if dist >= 20: break
            req = 0
            vs = lambda s: set(x for x in s if x[0] in 'va' and x != 'vcc')
            ss = lambda s: set(x for x in s if x[0] == 's' and x != 'scc' or x == 'vcc')
            if pv.kind == 'V' and ins.kind == 'M' and vs(pv.w) & ins.r: req = 2
            if pv.kind == 'V' and pv.op.startswith('v_dot') and vs(pv.w) & (ins.r | ins.w): req = max(req, 3)
            if pv.kind == 'M':
                npass = 4 if '16x16x32' in pv.op else 8
                t = {4: (6, 8, 8, 3), 8: (10, 12, 12, 7)}[npass]
                if ins.kind == 'M':
                    if pv.w & (ins.r - ins.srcc): req = max(req, t[1])
                    elif pv.w & ins.srcc and pv.w != ins.srcc: req = max(req, t[0])
                    elif pv.w & ins.w and pv.w != ins.srcc: req = max(req, t[0])
                elif ins.kind in 'VDG' and pv.w & (ins.r | ins.w): req = max(req, t[2])
                if ins.kind == 'V' and pv.srcc & ins.w: req = max(req, t[3])
            if pv.kind == 'S' and 'm0' in pv.w and ins.kind in 'GD' and 'm0' in ins.r: req = max(req, 1)
            if pv.stdata and pv.stdata & ins.w: req = max(req, 2)
            if pv.kind == 'V' and ss(pv.w):
                if ins.kind == 'G' and ss(pv.w) & ins.r: req = max(req, 5)
                if ins.kind == 'V' and ss(pv.w) & ins.r: req = max(req, 4 if 'lane' in ins.op else 2)
            if pv.kind == 'V' and ins.op in ('v_readfirstlane_b32', 'v_readlane_b32') and vs(pv.w) & ins.r: req = max(req, 1)
            if pv.kind == 'V' and ins.op.startswith('v_permlane') and vs(pv.w) & ins.r: req = max(req, 2)
            if pv.kind == 'V' and ins.kind == 'V' and ('dpp' in ins.text or 'row_' in ins.text or 'quad_perm' in ins.text) and vs(pv.w) & ins.r: req = max(req, 2)
            if pv.kind == 'V' and ins.kind == 'V' and ('sdwa' in pv.op or 'op_sel' in pv.text) and vs(pv.w) & (ins.r | ins.w): req = max(req, 1)
            d = dist
            if req - d > need: need = req - d; why = f'{pv.text} -> {ins.text} req {req} dist {d}'
            dist += states(pv); nm += pv.kind == 'M'
        if need > 0:
            probs.append(why)
            if fix: out.append(I(f's_nop {need - 1}'))
        out.append(ins)
    return out, probs

class Stream:
    def __init__(self): self.l = []
    def __call__(self, s, **kw):
        if isinstance(s, I): self.l.append(s); return
        for x in s.split('\n'):
            if x.strip(): self.l.append(I(x, **kw))
    def finish(self, verbose=True, **kw):
        st = insert_waits(self.l, **kw)
        verify_waits(st)
        st, probs = check_hazards(st, fix=True)
        if verbose:
            for p in probs: print('  nop:', p)
        return st
def render(st):
    return '\n'.join(i.text if i.kind == 'L' else '    ' + i.text for i in st) + '\n'

class Gaps:
    def __init__(self, n):
        self.n = n; self.g = {}
    def at(self, g): return self.g.setdefault(g, {'s': [], 'v': [], 'e': []})
    def ok(self, g, k):
        a = self.at(g)
        v = [x[0] for x in a['v']]
        if k == 'S': return not (0 <= g < self.n) or (not a['s'] and not a['e'] and 'G' not in v)
        if k == 'E': return not a['s'] and not a['e'] and len(v) <= 1 and 'G' not in v and 'W' not in v
        if len(v) >= (1 if a['e'] else 2): return False
        if k == 'G' and (a['s'] or a['e']) and 0 <= g < self.n: return False
        if k == 'W' and a['e']: return False
        if not v: return True
        pr = {k, v[0]}
        if k == v[0]: return k in 'VD'
        if 'G' in pr: return pr <= set('GDQ')
        if 'W' in pr: return pr == set('WV') and self.wv
        return True
    wv = True
    def put(self, g, k, item, back=False, lo=None, odd=False):
        if odd and 0 <= g < self.n:
            want = {'G': (['Q'],), 'E': (['Q'],), 'D': (['G'], ['V'], []), 'V': (['Q'], ['D'], ['V'])}.get(k, ())
            for w in want:
                c = [h for h in (range(g, g - 7, -1) if back else range(g, g + 7)) if h % 2 and 0 <= h < self.n and self.ok(h, k) and [x[0] for x in self.at(h)['v']] == w]
                if c: g = c[0]; break
        while not self.ok(g, k) or (odd and g % 2 == 0):
            g += -1 if back else 1
            assert lo is None or g >= lo, 'no slot'
        self.at(g)[{'S': 's', 'E': 'e'}.get(k, 'v')].append((k, item)); return g
    def items(self, g):
        if g not in self.g: return []
        a = self.g[g]; v = a['v']
        o = {'D': 0, 'Q': 0, 'W': 0, 'G': 1, 'V': 2}
        return [x[1] for x in a['s']] + [x[1] for x in sorted(v, key=lambda x: o[x[0]])] + [x[1] for x in a['e']]

def linscan(ivs, pool, name='', verbose=True):
    free = list(pool); busy = []; out = {}; peak = 0
    for k, (a, b) in sorted(ivs.items(), key=lambda kv: kv[1][0]):
        for e in sorted(busy, key=lambda e: e[0]):
            if e[0] < a: busy.remove(e); free.append(e[1])
        assert free, f'pool {name} exhausted at {a}'
        r = free.pop(0); out[k] = r; busy.append((b, r)); peak = max(peak, len(busy))
    if verbose: print(f'  pool {name}: peak {peak}/{len(pool)}')
    return out

class It:
    def __init__(self, kind, fn, target, hard=None, preds=(), slack=24, name=''):
        self.kind = kind; self.fn = fn; self.target = target; self.hard = hard
        self.preds = [p if isinstance(p, tuple) else (p, 1) for p in preds if p is not None]
        self.slack = slack; self.gap = None; self.name = name; self.succ = []
class ListSched:
    def __init__(self, n, gsp=1, gpair='GDQ', wv=True, ban=''): self.ban = ban.split(','); self.n = n; self.its = []; self.g = {}; self.gsp = gsp; self.gpair = gpair; self.wv = wv
    def add(self, *a, **k):
        it = It(*a, **k); it.idx = len(self.its); self.its.append(it); return it
    def compat(self, cur, k):
        v = [x for x in cur if x in 'VDQWG']; sc = [x for x in cur if x in 'SBE']
        if k in 'SBE':
            if sc or 'G' in v: return False
            if k in 'EB': return len(v) <= 1 and 'W' not in v
            return True
        if len(v) >= (1 if ('E' in sc or 'B' in sc) else 2): return False
        if k == 'G' and sc: return False
        if k == 'W' and ('E' in sc or 'B' in sc): return False
        if not v: return True
        pr = {k, v[0]}
        if ''.join(sorted(k + v[0])) in self.ban: return False
        if k == v[0]: return k in 'VD'
        if 'G' in pr: return pr <= set(self.gpair)
        if 'W' in pr: return pr == set('WV') and self.wv
        return True
    def run(self, g0):
        its = self.its
        for it in its:
            for p, d in it.preds: p.succ.append((it, d))
        order = []; indeg = {it.idx: len(it.preds) for it in its}
        st = [it for it in its if not it.preds]
        while st:
            x = st.pop(); order.append(x)
            for y, d in x.succ:
                indeg[y.idx] -= 1
                if indeg[y.idx] == 0: st.append(y)
        assert len(order) == len(its), 'cycle'
        for it in order:
            it.est = max([it.target] + [p.est + d for p, d in it.preds])
        for it in reversed(order):
            it.dl = it.est + it.slack
            if it.hard is not None: it.dl = min(it.dl, it.hard)
            it.hdl = it.hard if it.hard is not None else 10**9
            for y, d in it.succ: it.hdl = min(it.hdl, y.hdl - max(d, 1) - (y.kind == 'G'))
            it.dl = min(it.dl, it.hdl)
        self.place(g0)
        bad = [(it.name, it.kind, it.gap, it.hard) for it in its if it.hard is not None and it.gap > getattr(it, 'must', it.hard + 4)]
        assert not bad, f'missed deadlines: {bad[:6]}'
    def place(self, g0):
        its = self.its
        todo = [it for it in its if it.gap is None]
        g = g0; lastG = -10**9
        while todo:
            cur = []; placed = []
            while True:
                rdy = [it for it in todo if it.gap is None and it.target <= g and all(p.gap is not None and p.gap + d <= g for p, d in it.preds)]
                rdy.sort(key=lambda it: (0, it.hdl, it.idx) if it.hdl - g <= 5 else (1, it.dl, it.idx))
                if g - lastG < self.gsp: rdy = [it for it in rdy if it.kind != 'G']
                elif not cur:
                    gs = [it for it in rdy if it.kind == 'G']
                    if gs and rdy[0].hdl > g + 2 and rdy[0].kind not in 'B': rdy = gs
                pick = next((it for it in rdy if self.compat(cur, it.kind)), None)
                if pick is None: break
                pick.gap = g; cur.append(pick.kind); placed.append(pick)
                if pick.kind == 'G': lastG = g
            self.g[g] = placed
            todo = [it for it in todo if it.gap is None]
            g += 1
    def items(self, g):
        o = {'S': 0, 'B': 0, 'D': 1, 'Q': 1, 'W': 1, 'G': 2, 'V': 3, 'E': 4}
        return sorted(self.g.get(g, []), key=lambda it: o[it.kind])

class ListSched2(ListSched):
    def __init__(self, n, gsp=4, ban='', ovf=6, wv=True, fifo=None):
        super().__init__(n, gsp, 'G', wv, ban); self.ovf = ovf
        self.fifo = fifo
    def comp(self, it, g):
        ls, lf, ts, tf, lmax, mg, _ = self.fifo
        return max(g + (ls if it.slow else lf), self.last + it.lines * (ts if it.slow else tf), self.hbm + getattr(it, 'bw', 0))
    def place(self, g0):
        todo = [it for it in self.its if it.gap is None]
        g = g0; lastG = -10**9; plan = None; self.novf = 0; self.lost = 0
        key = lambda it: (0, it.hdl, it.idx) if it.hdl - g <= 5 else ((1, it.hdl, it.idx) if it.hdl - g <= 30 and it.dl <= g + 1 else (2, it.dl, it.idx))
        locks = [it for it in self.its if hasattr(it, 'rel')]
        def ready(at):
            busy = any(it.gap is not None and (it.rel.gap is None or it.rel.gap >= at) for it in locks)
            return sorted((it for it in todo if it.gap is None and it.target <= at and all(p.gap is not None and done(p, d, it) <= at for p, d in it.preds)
                           and not (busy and hasattr(it, 'rel')) and not (self.fifo and hasattr(it, 'lines') and not turn(it, at))), key=key)
        def turn(it, at):
            if self.fifo[4] > 30:
                if self.comp(it, at) - at > self.fifo[4]: return False
            elif sum(1 for f in self.fins if f > at) >= self.fifo[4]: return False
            for y in todo:
                if y.gap is None and hasattr(y, 'lines') and (y.due, y.idx) < (it.due, it.idx) and y.target <= at + 4 and \
                   all(p.kind == 'S' or (p.gap is not None and p.gap + d <= at + 4) for p, d in y.preds): return False
            return True
        def done(p, d, it):
            if self.fifo and d >= 30 and hasattr(p, 'fin'): return min(p.fin + self.fifo[5], max(it.hdl - 1, p.gap + 20))
            return p.gap + d
        if self.fifo:
            self.fins = list(self.fifo[6]) if isinstance(self.fifo[6], tuple) else [self.fifo[6]]
            self.last = self.fins[-1]; self.hbm = -10**6
            key0 = key
            key = lambda it: (1, it.due, it.idx) if hasattr(it, 'lines') else key0(it)
        while todo:
            cur = []; placed = []
            if hasattr(self, 'gsp2') and g >= self.gsp2[0]: self.gsp = self.gsp2[1]
            inl = 0 <= g < self.n
            if plan is not None:
                plan.gap = g; placed.append(plan); lastG = g
                if self.fifo and hasattr(plan, 'lines'):
                    fin = self.comp(plan, g)
                    if getattr(plan, 'bw', 0): self.hbm = max(g + self.fifo[0], self.hbm + plan.bw)
                    self.last = plan.fin = fin; self.fins.append(fin)
                plan = None
            else:
                r = ready(g)
                bar = [it for it in r if it.kind == 'B']
                if bar and (r[0].hdl > g or r[0].kind == 'B'):
                    bar[0].gap = g; placed.append(bar[0])
                    nxt = [it for it in ready(g + 1) if it.kind == 'G']
                    if nxt and g + 1 - lastG >= self.gsp: plan = nxt[0]
                else:
                    nxt = [it for it in ready(g + 1) if it.kind == 'G'] if g + 1 - lastG >= self.gsp else []
                    urgent = sum(1 for it in ready(g + 1) if it.kind in 'VDQ' and it.hdl <= g + 2)
                    back = sum(1 for it in ready(g + 1) if it.kind in 'VDQE' and it.hdl - g <= 30 and it.dl <= g - 1)
                    prep = bool(nxt) and (urgent <= 1 or nxt[0].hdl <= g + 1) and (back <= 2 or nxt[0].hdl - g <= 30)
                    soon = not prep and not urgent and g + 2 - lastG >= self.gsp and any(it.kind == 'G' for it in ready(g + 2))
                    while True:
                        rr = [it for it in ready(g) if it.kind not in 'GB']
                        if soon and inl:
                            nl = sum(1 for it in ready(g + 1) if it.kind in 'DQ')
                            if nl <= 2 and any(it.kind == 'V' for it in rr): rr = [it for it in rr if it.kind not in 'DQ']
                        if prep:
                            nv = [k for k in cur if k in 'VDQW']
                            if nv: rr = [it for it in rr if it.kind in 'SE' or (it.kind != 'V' and 'V' not in nv)]
                            elif any(it.kind in 'DQ' for it in rr): rr = [it for it in rr if it.kind != 'V']
                        if getattr(self, 'mix', 0) and inl and not prep and not soon:
                            nv = [k for k in cur if k in 'VDQW']
                            if len(nv) == 1 and nv[0] in 'VDQ':
                                alt = [it for it in rr if (it.kind in 'DQ' if nv[0] == 'V' else it.kind == 'V')]
                                if alt and not any(it.hdl - g <= 3 or it.dl <= g - self.mix for it in rr if it.kind in 'VDQ' and it not in alt): rr = [it for it in rr if it.kind in 'SE'] + alt
                        pick = next((it for it in rr if self.compat(cur, it.kind)), None)
                        if pick is None: break
                        pick.gap = g; cur.append(pick.kind); placed.append(pick)
                    if prep: plan = nxt[0]
                    elif inl and not any(k in 'SEW' for k in cur) and len(cur) == 2:
                        late = [it for it in ready(g) if it.kind in 'VDQ' and (it.dl <= g - self.ovf or it.hdl <= g + 1) and (it.kind == 'V' or ('V' in cur and not (it.kind == 'Q' and 'Q' in cur)))]
                        if late and cur != ['V', 'V'] or [it for it in late if it.kind in 'DQ']:
                            x = late[0] if cur != ['V', 'V'] else [it for it in late if it.kind in 'DQ'][0]
                            x.gap = g; placed.append(x); self.novf += 1
                    if plan is None and not any(k == 'V' for k in cur[1:]) and not (len([k for k in cur if k in 'VDQW']) == 2 and 'V' in cur):
                        nxt = [it for it in ready(g + 1) if it.kind == 'G'] if g + 1 - lastG >= self.gsp else []
                        if nxt and len(placed) == len(cur): plan = nxt[0]
            for it in placed:
                if hasattr(it, 'lead'): y, k_ = it.lead; y.dl = min(y.hdl, max(g, y.target) + k_)
            if self.fifo and getattr(self, 'shift', False):
                for it in placed:
                    dl_ = max([0] + [p.fin - g for p, d in it.preds if d >= 30 and hasattr(p, 'fin')]) * getattr(it, 'credit', 1) + getattr(it, 'dur', 0)
                    if dl_ > 0:
                        self.lost += dl_; self.last -= dl_; self.hbm -= dl_; self.fins = [f - dl_ for f in self.fins]
                        for y in self.its:
                            if hasattr(y, 'fin') and y.fin > g: y.fin = max(g, y.fin - dl_)
            self.g[g] = placed
            todo = [it for it in todo if it.gap is None]
            g += 1
```

```python
import sys, subprocess, re
sys.path.insert(0, 'tools')
from asmlib import *
from sched import *

M, K, N = 2048, 1024, 3584
QROW = N * 4
RS = 464
RING = 65536
NIT = 8
PROW = 1024
PNT = 128 * PROW
EOFF = 16 * PNT
WSUSE = EOFF + 16 * 128
TAGC = 0x9e3779b9
SPIN = 4096

def sizes(st):
    txt = '.amdgcn_target "amdgcn-amd-amdhsa--gfx950"\n.text\n'
    for x in st:
        if x.kind == 'L': continue
        t = x.text
        if x.op.startswith('s_cbranch') or x.op == 's_branch': t = x.op + ' 0'
        txt += t + '\n'
    open('_sz.s', 'w').write(txt)
    r = subprocess.run(['llvm-mc', '-triple=amdgcn-amd-amdhsa', '-mcpu=gfx950', '-show-encoding', '_sz.s'], capture_output=True, text=True)
    assert r.returncode == 0, r.stderr[:500]
    enc = [len(m.split(',')) for m in re.findall(r'encoding: \[(.*?)\]', r.stdout)]
    out = []; k = 0
    for x in st:
        if x.kind == 'L': out.append(0)
        else: out.append(enc[k]); k += 1
    assert k == len(enc)
    return out

def gemm_kernel(skew=0, stamps=False, pticks=None, ticks=(), rt=False, dg='', pause=None, swave=0, test_help=False, verbose=True,
                aux_out='sc1', xm=8, LA_P=110, LAT_P=60, g_p=(0, 1, 60, 110), LA_X=220, LAT_X=60, dma_sp=4, dma1=0,
                rB=(2, 4, 60), rvis=(85, 140), gK=130, gKh=160, pads=True, nf6=1, gbm=16, lsl=20, split=(0, 1, 2), ybar=32, chk0all=False,
                bar_at=60, bar0=76, gsp=4, wv=False, ban='', dhard=7, ovf=12, age_l=9, DL=4, bw=5, lateset=115, g_sc=470,
                pre='dn', layout='XLDSGKTWBQPdE', roles=('XLDSGKTWBQPdE', 'LSXDGTKBQPdE', 'LSDGTXBQPdKE', 'LSDGTXBQPdKE'), clk=4, warm={0: 0},
                fifo=(52, 32, 0.23, 0.15, 75, 4, 30), lk0=0, xdue=15, pdue=30, rdue=0, rbw=0, xds=0, grp=(1,1,1,1,1,1,1,1), tsp=4, rl=7, knee=None, ovf1=None, shift=True, snake=True, n5=7, plate=1, ychk=24, kprim=0, xf=0, b7=False, rot=None, cpf2=None, aux_q='nt', aux_x='', addtid=True, wsp=0, fsync=None, near=True, g_at=600, g_ep=120, asl=0, atb=True, mix=4, follow=0, hmin=5):
    S = 2; dnop = None; aux_last = None
    kap = tuple(range(8))
    ACC = lambda t, i: 128 + (t * 8 + i) * 4
    slot = lambda it: (it + 1) % 3
    P1 = NIT - S
    mf = []
    def own(it, b, t, i, rev=False):
        for st in ((1, 0) if rev else (0, 1)): mf.append((t, i, (it, b, st, t), (it, b, i), 4*st))
    def shr(it, b, i): mf.append((3, i, (it, b, 0, 3), (it, b, i), 2))
    for it in range(P1):
        for b in range(2):
            nt_ = n5 if it == 5 else 8
            for t in range(3):
                for i in range(nt_): own(it, b, t, i, snake and i % 2)
            for i in range(nt_):
                if it in split: shr(it, b, i)
                elif b == 0:
                    for b2 in ((1, 0) if snake and i % 2 else (0, 1)): shr(it, b2, i)
    P2 = len(mf)
    def chain(t, i, its):
        for it in its:
            for b in range(2): shr(it, b, i) if t == 3 else own(it, b, t, i)
    for t in (3, 0, 1, 2):
        for i in range(nf6): chain(t, i, (6,))
    for i in range(8):
        for t in (3, 0, 1, 2): chain(t, i, (7,) if i < nf6 else (6, 7) if i < n5 else (5, 6, 7))
    NG = len(mf)
    assert NG == 896
    wfirst, wlast, xfirst, xlast, alast, afirst = {}, {}, {}, {}, {}, {}
    for g, (t, i, w, x, o) in enumerate(mf):
        wfirst.setdefault(w, g); wlast[w] = g; xlast[x] = g; alast[(t, i)] = g; afirst.setdefault((t, i), g)
        for st in range(2):
            if o == 2 or o == 4*st: xfirst.setdefault((x[0], x[1], st, x[2]), g)
    L = ListSched2(NG, gsp, ban, ovf, wv, fifo)
    areg = {}; qreg = {}; treg = {}
    xiv = {}; xreg = {}; aiv = {}; qiv = {}; tiv = {}
    def live(d, k, *its): d.setdefault(k, []).extend(its)
    PRE = -1000
    vis = {}; bar = {}
    for it in range(P1):
        bar[it] = vis[it + 1, 0] = vis[it + 1, 1] = L.add('B', lambda it=it: I('s_barrier', uses={f'q{it}', f'dma{it+1}0'} | (set() if it + 1 in split else {f'dma{it+1}1'})),
                                                         112*it + (bar0 if it == 0 else bar_at if it < 5 else bar_at * n5 // 8), slack=2, name=f'B{it}')
    if b7: bar[6] = vis[7, 0] = vis[7, 1] = L.add('B', lambda: I('s_barrier', uses={'dma70', 'dma71'}), P2 + 14*nf6 - 26, slack=2, name='B7')
    else:
        bar[6] = vis[7, 0] = vis[7, 1] = bar[5]; bar[5].target += 12
        bar[5].fn = lambda: I('s_barrier', uses={'q5', 'dma60', 'dma61', 'dma70', 'dma71'})
    for it in split: vis[it, 1] = L.add('B', lambda it=it: I('s_barrier', uses={f'dma{it}1'}), 112*it + ybar, slack=2, name=f'Y{it}')
    def qread(x):
        it, b, st, i = x
        sl = slot(it)
        base = 40 + (2 if sl == 2 else 0) + st
        off = (0 if sl == 2 else sl*32768) + b*16384 + i * 2048
        k = (it, b, i)
        return lambda: I(f'ds_read_b128 a[{xreg[k]+4*st}:{xreg[k]+4*st+3}], v{base} offset:{off}', defs={f'q{it}'})
    def addq(x, nom):
        it = L.add('Q', qread(x), nom, hard=xfirst[x] - dhard, preds=[(vis[x[:2]], 0)] if x[:2] in vis else [], slack=6, name=f'Q{x}')
        live(xiv, (x[0], x[1], x[3]), it, xlast[(x[0], x[1], x[3])])
        return it
    for it in range(P1):
        for b in range(2):
            for k in range(2*(n5 if it == 5 else 8)):
                q = addq((it, b, k % 2, k // 2), 112*it + ((ybar + 1 + 2*k if it in split else 1 + 3*k) if b else -47 + 3*k))
                if b: bar[it].preds.append((q, 8))
    xs = sorted([x for x in xfirst if xfirst[x] >= P2], key=lambda x: xfirst[x])
    for k, x in enumerate(xs): addq(x, min(P2 - 34 + int(3.5*k), xfirst[x] - 12))
    def dma(it):
        out = []
        for half in range(2):
            for j in range(4):
                if rot is None:
                    m0 = f's_add_u32 m0, s57, {slot(it)*32768 + half*16384}' if j == 0 else None
                    so = f's_add_u32 s{(56, 3)[half]}, s{(55, 69)[half]}, {256*it}' if j == 0 else None
                    out.append((m0, so, I(f'buffer_load_dwordx4 v{36+j}, s[8:11], s{(56, 3)[half]} offen offset:{j*1024} {aux_x} lds', defs={f'dma{it}{half}'})))
                else:
                    pr_, sp_ = j // 2, it in split
                    m0 = f's_xor_b32 m0, s{57 if sp_ else 60}, {(RING + slot(it)*32768) ^ half*16384 ^ pr_*2048}' if j % 2 == 0 else None
                    so = f's_xor_b32 s{(56, 3)[pr_]}, s{55 if sp_ else 69}, {256*it ^ half*128 ^ pr_*32768}' if j % 2 == 0 else None
                    out.append((m0, so, I(f'buffer_load_dwordx4 v{36+j%2}, s[8:11], s{(56, 3)[pr_]} offen offset:{j%2*1024} lds', defs={f'dma{it}{half}'})))
        return out
    hist = []
    npre = (8 + dma1) if 'd' in layout else 4
    for it in range(NIT):
        for k, (m0, so, d) in enumerate(dma(it)):
            if 8*it + k < npre: continue
            vb = vis[it, k // 4]
            t = max(vis[it, 0].target - LA_X, 3) + dma_sp*k if it > 1 else 1
            pr = [(hist[-1], 2)] if hist else []
            if it > 2: pr.append((bar[it - 3], 1))
            if m0: pr.append(L.add('S', lambda m0=m0: I(m0), max(t - 3, 0), preds=hist[-1:], slack=4))
            if so: pr.append(L.add('S', lambda so=so: I(so), max(t - 6, 0), preds=(hist[-5:-4] if len(hist) >= 5 else []) if rot is None else hist[-3:-2], slack=4))
            x = L.add('G', lambda d=d: d, t, preds=pr, slack=50 if it > 1 else 0, name=f'dma{it}.{k}')
            x.lines = 32; x.slow = 2*it >= xf; x.due = vb.target + (xdue if it < 6 or (b7 and it < 7) else -50 if it == 6 else 0) - (xds if it == 2 else 0)*(7 - k)
            vb.preds.append((x, LAT_X))
            hist.append(x)
    if cpf2:
        x = L.add('G', lambda: I('buffer_load_dword v1, v45, s[48:51], 0 offen offset:256'), cpf2, slack=0, name='C'); x.lines = 4; x.slow = False; x.due = cpf2
    def own_load(r): return f'buffer_load_dwordx3 v[{r}:{r+2}], v18, s[4:7], s61 offen {aux_q}'
    def sh_load(r, a=19): return f'buffer_load_dword v{r+3}, v{a}, s[4:7], s61 offen {aux_q}'
    def pack(q):
        return [f'v_or_b32 v{q[0]+3}, s47, v{q[0]+3}'] + [f'v_lshl_or_b32 v{q[0]+c}, v{q[e]+c}, {4*e}, v{q[0]+c}' for e in range(1, 8) for c in range(4 if e < 4 else 3)]
    def own_store(r): return f'buffer_store_dwordx4 v[{r}:{r+3}], v20, s[12:15], s62 offen sc1'
    rows = [(e, sh) for e in range(8) for sh in range(2 if e < 4 else 1)]
    g_r, sp, lat = rB
    ld = {}; prev = None
    for k, (e, sh) in enumerate(rows):
        pr = [prev]
        if e and not sh: pr.append(L.add('S', lambda: I(f's_add_u32 s61, s61, {QROW}'), 0, preds=[prev], slack=2))
        prev = x = ld[e, sh] = L.add('G', lambda e=e, sh=sh: I((sh_load if sh else own_load)(qreg[('B', e)])), g_r + sp*k, preds=pr, slack=25)
        x.lines = 8 if sh else 24; x.slow = True; x.due = gKh - rdue*(7 - e); x.bw = rbw / 3 if sh else rbw
    if gK:
        rdone = L.add('B', lambda: [I(y) for y in pack([qreg[('B', e)] for e in range(8)]) + [own_store(qreg[('B', 0)])]] + (late_blk if lateset == 'block' else []),
                      gK, hard=gKh, preds=[(y, lat) for y in ld.values()], slack=0)
        rdone.must = 10**6; rdone.dur = 9 + (13 if lateset == 'block' else 0)
        for (e, sh), y in ld.items(): live(qiv, ('B', e), y, rdone)
    else:
        x = None; seq = [(0, 1)] + [(e, int(c == 3)) for e in range(1, 8) for c in range(4 if e < 4 else 3)]
        for k, key in enumerate(seq):
            x = L.add('V', lambda k=k: I(pack([qreg[('B', e)] for e in range(8)])[k]), 0, preds=[(x, 0) if x else None, (ld[key], lat)], slack=10)
            live(qiv, ('B', key[0]), ld[key], x)
        rdone = L.add('G', lambda: I(own_store(qreg[('B', 0)])), 0, preds=[x], slack=2)
        live(qiv, ('B', 0), ld[0, 0], rdone)
    lk = [[w, q, None, 10**6, None] for w in sorted(wfirst, key=lambda w: (w[0], wfirst[w])) for q in range(4)]
    gb = max(wfirst.values()) - gbm
    nj = nh = 10**6
    for e in reversed(lk):
        w = e[0]
        nh = e[4] = min(wfirst[w] - dhard, nh - 1) if w[0] < P1 else wfirst[w] - dhard - (3 - e[1])
        if w[0] >= P1: nh = 10**6
        else: nj = min(wfirst[w] - 10 - w[2], nj - (2 if w[0] < 5 else n5 / 4)); e[3] = int(nj + 1000.99) - 1000
    j0 = sum(1 for e in lk if e[3] < lk0)
    pts = [(j0, lk0)] + [(j_, g_) for g_, j_ in (knee or [])] + [(len(lk) - 1, gb)]
    for j, e in enumerate(lk):
        if j < j0: e[2] = e[3]; continue
        (ja, ga), (jb, gb_) = next((a, b) for a, b in zip(pts, pts[1:]) if j <= b[0])
        e[2] = min(e[3], int(ga + (j - ja) * (gb_ - ga) / (jb - ja)))
    qk = lambda c, st: ('c', c[0], c[1], st)
    cfirst = {}; cjit = {}
    for w, q, g, jit, _ in lk: cfirst[w[:2]] = min(cfirst.get(w[:2], 10**9), g); cjit[w[:2]] = min(cjit.get(w[:2], 10**9), jit)
    sreg = ['0', 's40', 's41', 's42', 's43', 's44', 's45', 's72']
    def cload(c, st):
        r = qreg[qk(c, st)]
        return f'buffer_load_dwordx4 v[{r}:{r+3}], v{(32, 33, 34, 44)[2*c[1] + st]}, s[12:15], {sreg[c[0]]} offen sc1'
    def chk(c, t): return [f'v_bitop3_b32 v{t}, v{qreg[qk(c, 0)]+3}, v{qreg[qk(c, 1)]+3}, s76 bitop3:0x7e', f'v_cmp_lt_u32 vcc, 0xffff, v{t}']
    corder = sorted(cfirst)
    cbr = {}; sset = {it: L.add('S', lambda it=it: I(f's_mov_b32 {sreg[it]}, {16*PROW*it}'), 12*(it - 1), slack=3) for it in range(1, NIT)}
    for n, c in enumerate(corder):
        lds = []
        for st in range(2):
            if c == (0, 0) or (c == (0, 1) and ('p' in layout or plate)):
                live(qiv, qk(c, st), PRE + 2*n + st); continue
            t = max(cfirst[c] - LA_P + 3*st, 1, g_p[c[0]] if c[0] < 2 else g_p[2 + c[1]])
            pr = [sset.get(c[0])] + ([(rdone, rvis[c[1]])] if c[0] >= 4 else [])
            x = L.add('G', lambda c=c, st=st: I(cload(c, st)), t, preds=pr, slack=10, name=f'P{c}{st}')
            x.lines = 32; x.slow = False; x.due = min(cjit[c], cfirst[c] + pdue) - 10
            lds.append((x, LAT_P)); live(qiv, qk(c, st), x)
        nm = f'{c[0]}_{c[1]}'
        if c == (0, 0) or (c == (0, 1) and chk0all): continue
        x = L.add('V', lambda c=c: I(chk(c, treg[c])[0]), max(cfirst[c] - 13, ychk), preds=lds, slack=4)
        y = L.add('V', lambda c=c: I(chk(c, treg[c])[1]), 0, preds=[x], slack=2)
        live(tiv, c, x, y)
        cbr[c] = y.rel = L.add('E', lambda nm=nm: [I(f's_cbranch_vccnz L_slow{nm}'), I(f'L_back{nm}:')], 0, preds=[(y, 2)], slack=1)
    wo = lambda w: (('w', w[0], 3), 4*w[1]) if w[3] == 3 else (('w', w[0], w[1], w[3]), 4*w[2])
    dall = []
    for n, (w, q, g, jit, hard) in enumerate(lk):
        sl = max(3, min(lsl if not ovf1 or g > ovf1[0] else ovf1[1], jit - g + 3, (gb - g) // 3))
        st, sel = (q // 2, q % 2) if w[3] == 3 else (w[2], q)
        v = L.add('V', lambda n=n, w=w, st=st, sel=sel: I(f'v_perm_b32 v{treg[n]}, v{qreg[qk(w, st)] + w[3]}, v35, s{36+sel}'), g - 2, preds=[cbr.get(w[:2])], slack=sl)
        d = L.add('D', lambda n=n, w=w, q=q: I(f'ds_read_b32 a{areg[w]+q}, v{treg[n]}', defs={'lut'}), g, hard=hard, preds=[v], slack=3, name=f'D{w}{q}')
        d.must = wfirst[w] - 3; dall.append(d)
        if follow is not None: v.lead = (d, follow)
        live(tiv, n, v, d); live(xiv, wo(w)[0], d, wlast[w]); live(qiv, qk(w, st), v)
    STG = 1024; TB = 16*RS; EXB = STG + 7*TB
    xo_ = lambda i: (i - 3)*2048 if i >= 3 else RING + 16384 - EXB + i*2048
    assert EXB % 8 == 0 and EXB + 5*2048 <= RING and n5 >= 4
    so_ = lambda i: (i - 1)*TB if i else RING - STG
    s = Stream()
    s('s_mul_i32 s66, s63, 96\ns_lshl_b32 s67, s65, 5\ns_lshl_b32 s70, s64, 2\ns_add_u32 s67, s67, s70\ns_add_u32 s67, s67, 384')
    s('s_mul_i32 s71, s59, 448')
    s('s_add_u32 s70, s66, s71\nv_mad_u32_u24 v22, v3, 24, s70')
    s('s_add_u32 s70, s67, s71\nv_lshl_add_u32 v23, v3, 3, s70')
    s(f's_mov_b32 s34, {N*2}\ns_mov_b32 s35, 0x20000\ns_mov_b32 s26, 256\ns_mov_b32 s27, 0x20000\ns_lshl_b32 s77, s59, 4')
    s(f's_mov_b32 s18, {M*N*2}\ns_mov_b32 s19, 0x20000')
    s(f's_sub_u32 s70, {STG}, s71\nv_mul_u32_u24 v16, {RS}, v4')
    s('v_add3_u32 v26, v22, v16, s70\nv_add3_u32 v28, v23, v16, s70')
    if addtid: s(f's_lshl_b32 s70, s63, 9\ns_add_u32 s60, s70, {EXB}\ns_xor_b32 s70, s70, 512\ns_add_u32 s70, s70, {EXB}\nv_lshl_add_u32 v30, v2, 2, s70')
    else: s(f'v_lshlrev_b32 v29, 3, v0\nv_xor_b32 v30, 512, v29\nv_add_u32 v29, {EXB}, v29\nv_add_u32 v30, {EXB}, v30')
    s('v_mul_u32_u24 v16, 2341, v2\nv_lshrrev_b32 v16, 16, v16')
    s(f's_mul_i32 s73, s63, {4*RS}\ns_add_u32 s73, s73, {STG}')
    s('v_add_lshl_u32 v24, v2, v16, 4\nv_add_u32 v24, s73, v24')
    s(f's_lshl_b32 s74, s58, 7\ns_lshl_b32 s75, s63, 2\ns_add_u32 s74, s74, s75\ns_mul_i32 s74, s74, {N*2}\ns_add_u32 s74, s74, s71')
    s(f'v_mul_u32_u24 v17, {N*2 - 448}, v16\nv_lshl_add_u32 v25, v2, 4, v17')
    s('v_lshrrev_b32 v16, 1, v16\nv_lshlrev_b32 v16, 30, v16\nv_add3_u32 v25, v25, v16, s74')
    assert RS - 448 == 16 and all((l * 2341) >> 16 == l // 28 for l in range(64))
    s('v_mov_b32 v45, 1\nv_lshlrev_b32 v1, 22, v0\nv_mov_b32 v47, s76')
    assert WSUSE <= 1 << 22 and not fsync and not cpf2 and lateset != 'pre'
    late_l = s.l
    x = None
    for k, y in enumerate(late_l if lateset == 'loop' else []):
        x = L.add(y.kind, lambda y=y: y, 2*k, preds=[(x, 0 if x.kind == 'S' and y.kind == 'V' or x.kind == y.kind == 'V' else 1)] if x else [], slack=30)
    late_blk = late_l
    if isinstance(lateset, int): L.add('B', lambda: late_blk, lateset, slack=0).dur = 13
    if lateset != 'pre': late_l = []
    gs0 = g_sc
    s0 = L.add('G', lambda: I(f'buffer_load_dwordx4 v[{qreg["sp0"]}:{qreg["sp0"]+3}], v22, s[32:35], 0 offen'), gs0)
    s1 = L.add('G', lambda: I(f'buffer_load_dwordx2 v[{qreg["sp1"]}:{qreg["sp1"]+1}], v22, s[32:35], 0 offen offset:16'), gs0 + 6)
    s2 = L.add('G', lambda: I(f'buffer_load_dword v{qreg["sp1"]+2}, v23, s[32:35], 0 offen'), gs0 + 12)
    live(qiv, 'sp0', s0); live(qiv, 'sp1', s1, s2)
    spk = lambda d: qreg['sp0'] + d if d < 4 else qreg['sp1'] + d - 4
    sc = {}
    for t in (3, 0, 1, 2):
        for r in range(4 if t < 3 else 2):
            j = 3*r + t if t < 3 else 12 + r
            f = (lambda t=t, r=r, j=j: I(f'v_lshlrev_b32 v{qreg[("sc",t)]+r}, 16, v{spk(j//2)}')) if j % 2 == 0 else \
                (lambda t=t, r=r, j=j: I(f'v_and_b32 v{qreg[("sc",t)]+r}, 0xffff0000, v{spk(j//2)}'))
            sc[t, r] = L.add('V', f, alast[(t, 0)] - 40, hard=alast[(t, 0)] + DL - 1, preds=[(s0, 50), (s1, 50), (s2, 50)], slack=40)
            live(qiv, ('sc', t), sc[t, r], 10**6); live(qiv, 'sp0', sc[t, r]); live(qiv, 'sp1', sc[t, r])
    x = L.add('G', lambda: I('buffer_atomic_add v45, v1, s[24:27], s77 offen sc0 sc1'), g_at, preds=[s0, s1, s2, bar[6]] + list(cbr.values()), slack=asl)
    for t in (f'v_bitop3_b32 v45, v45, {1 if "a" in dg else 15}, v0 bitop3:0xbe', 'v_lshlrev_b32 v45, 22, v45'):
        x = L.add('V', lambda t=t: I(t), NG - g_ep, preds=[(x, 0)])
    L.add('G', lambda: I('buffer_store_dword v47, v45, s[12:15], s78 offen sc1'), 0, preds=[x])
    def mulq(t, i, pr=()):
        c = ACC(t, i)
        return [L.add('V', lambda r=r: I(f'v_mul_f32 v{c+r}, v{c+r}, v{qreg[("sc",t)]+r}'), alast[(t, i)] + DL, preds=[(sc[t, r], 0)] + ([(pr[r], 0)] if pr else []), slack=8 if t < 2 else 2)
                for r in range(4 if t < 3 else 2)]
    lastst = [None, None]
    lutbar = 1 if grp[1] == 1 else 0
    def e2(i, bar, n, gate=None):
        rds = [L.add('Q', lambda k=('e2', i, j), j=j: I(f'ds_read_b128 v[{qreg[k]}:{qreg[k]+3}], v24 offset:{so_(i) + 2*j*RS}'), 0, preds=[(bar, 2*tsp*n)], slack=j) for j in range(2)]
        for j in range(2):
            k = ('e2', i, j); so = 66 + j
            sm = L.add('S', lambda j=j, so=so: I(f's_mov_b32 s{so}, {(16*i + 2*j)*N*2}'), P2 + j, preds=[lastst[j]], slack=2)
            x = L.add('G', lambda k=k, so=so: I(f'buffer_store_dwordx4 v[{qreg[k]}:{qreg[k]+3}], v25, s[16:19], s{so} offen {aux_out}'), 0,
                      preds=[(rds[j], rl), sm, gate, (lastst[1 - j], tsp) if lastst[1 - j] else None], slack=1)
            live(qiv, k, rds[j], x); lastst[j] = x
        return rds
    assert sum(grp) == 8 and grp[0] == 1
    if addtid: m0ex = L.add('S', lambda: I('s_mov_b32 m0, s60'), P2 - 20, preds=hist[-1:]); assert rot is None
    stg = []; bq = []; i0 = 0; prevg = []; syn = []
    for n in grp:
        tiles = list(range(i0, i0 + n)); i0 += n
        if addtid:
            ex = [L.add('D', lambda c=ACC(3, i), i=i, r=r: I(f'ds_write_addtid_b32 v{c+2+r} offset:{xo_(i) + 256*r}', defs={f'ex{i}'}), alast[(3, i)] + DL, preds=[bar[5] if i < 3 else tbl_free, (m0ex, 2)], slack=3)
                  for i in tiles for r in range(2)]
        else:
            ex = [L.add('W', lambda c=ACC(3, i), i=i: I(f'ds_write_b64 v29, v[{c+2}:{c+3}] offset:{xo_(i)}', defs={f'ex{i}'}), alast[(3, i)] + DL, preds=[bar[5] if i < 3 else tbl_free], slack=3) for i in tiles]
        lut = tiles[0] == lutbar
        if fsync:
            n_ = len(bq); tk = ('sy', n_)
            arr = L.add('W', lambda: I('ds_add_u32 v35, v45 offset:128'), 0, preds=ex + [p for p, _ in stg] + (dall if lut else []) + bq[-1:], slack=0)
            b_ = L.add('D', lambda tk=tk: I(f'ds_read_b32 v{treg[tk]}, v35 offset:128'), 0, preds=[(arr, fsync)], slack=0)
            cm = L.add('V', lambda tk=tk, n_=n_: I(f'v_cmp_gt_u32 vcc, {8*(n_ + 1)}, v{treg[tk]}'), 0, preds=[(b_, rl - 2)], slack=0)
            gate = cm.rel = L.add('E', lambda n_=n_: [I(f's_cbranch_vccnz L_sy{n_}'), I(f'L_syb{n_}:')], 0, preds=[(cm, 2)], slack=0)
            live(tiv, tk, b_, gate); bq.append(gate); spec = [b_]; syn.append((spec, cm))
            if lut: tbl_free = gate
            for m_, i in enumerate(prevg): spec += e2(i, b_, m_, gate)
        else:
            gate = None
            b_ = L.add('B', lambda tiles=tiles, prevg=prevg, lut=lut: I('s_barrier', uses={f'ex{i}' for i in tiles} | {f'stg{i}' for i in prevg} | ({'lut'} if lut else set())), 0,
                       preds=[(x, bw) for x in ex] + stg + ([(d, bw) for d in dall] if lut else []), slack=0)
            bq.append(b_)
            if lut: tbl_free = b_
            for m_, i in enumerate(prevg): e2(i, b_, m_)
        stg = []
        for i in tiles:
            c = ACC(3, i); k = ('ex', i)
            gx = L.add('D', lambda i=i, k=k: I(f'ds_read2st64_b32 v[{qreg[k]}:{qreg[k]+1}], v30 offset0:{xo_(i)//256} offset1:{xo_(i)//256+1}' if addtid else f'ds_read_b64 v[{qreg[k]}:{qreg[k]+1}], v30 offset:{xo_(i)}'), 0, preds=[(b_, 0)], slack=3)
            ad = [L.add('V', lambda r=r, c=c, k=k: I(f'v_add_f32 v{c+r}, v{c+r}, v{qreg[k]+r}'), 0, preds=[(gx, rl), gate], slack=6) for r in range(2)]
            if fsync: spec.append(gx)
            mu = mulq(3, i, ad)
            cv = L.add('V', lambda c=c, k=k: I(f'v_cvt_pk_bf16_f32 v{qreg[k]}, v{c}, v{c+1}'), 0, preds=[(y, 0) for y in mu], slack=6)
            x = L.add('W', lambda i=i, k=k: I(f'ds_write_b32 v28, v{qreg[k]} offset:{so_(i)}', defs={f'stg{i}'}), 0, preds=[cv], slack=6)
            live(qiv, k, gx, x)
            stg.append((x, bw))
            mu = {t: mulq(t, i) for t in range(3)}
            cvs = []
            for u in range(3):
                k = ('cv', i, u // 2)
                cvs.append([L.add('V', lambda k=k, u=u, v=v, i=i: I(f'v_cvt_pk_bf16_f32 v{qreg[k]+2*(u%2)+v}, v{ACC((4*u+2*v)%3, i) + (4*u+2*v)//3}, v{ACC((4*u+2*v+1)%3, i) + (4*u+2*v+1)//3}'),
                            0, preds=[(mu[j % 3][j // 3], 0) for j in (4*u + 2*v, 4*u + 2*v + 1)], slack=3 + u) for v in range(2)])
            for u in range(3):
                k = ('cv', i, u // 2)
                x = L.add('W', lambda k=k, u=u, i=i: I(f'ds_write_b64 v26, v[{qreg[k]+2*(u%2)}:{qreg[k]+2*(u%2)+1}] offset:{so_(i) + 8*u}', defs={f'stg{i}'}), 0,
                          preds=(cvs[u] if i != 7 else cvs[0] + cvs[1] + cvs[2]) + [tbl_free if i else bar[5]] + ([(x, wsp)] if u and wsp else []), slack=2)
                live(qiv, k, x, *cvs[u]); stg.append((x, bw))
        if fsync: gate.preds += [(y, 0) for y in spec]
        prevg = tiles
    bfin = L.add('B', lambda: I('s_barrier', uses={f'stg{i}' for i in prevg}), 0, preds=stg, slack=0)
    for i in prevg: e2(i, bfin, 0)
    L.gsp2 = (P2, min(tsp, gsp)); L.shift = shift; L.mix = mix
    L.run(-60)
    if verbose: print('  barriers', sorted(set(v.gap for v in vis.values())), 'tiles', [b.gap for b in bq], 'round store', rdone.gap, 'overflow', L.novf, 'lost', int(L.lost))
    if verbose and fifo: print('  G:', ' '.join(f'{x.name or "r"}@{x.gap}>{int(x.fin)}' for x in sorted((x for x in L.its if hasattr(x, 'fin')), key=lambda x: x.gap)).replace('(', '').replace(')', '').replace(', ', ''))
    def iv(d, ext=0):
        o = {}
        for k, v in d.items():
            gs = [x.gap if isinstance(x, It) else x for x in v]
            o[k] = (min(gs), max(gs) + ext)
        return o
    xreg.update(linscan(iv(xiv), [8*k for k in range(32)], 'octets', verbose))
    areg.update({w: xreg[wo(w)[0]] + wo(w)[1] for w in wfirst})
    qreg.update(linscan(iv(qiv, 1), [64 + 4*k for k in range(16)] + [48, 52], 'quads', verbose))
    treg.update(linscan(iv(tiv), list(range(56, 64)) + ([5, 6, 7, 27, 29, 31, 46] if follow is not None and addtid else [5, 6, 7, 27, 31, 46] if follow is not None else []), 'temps', verbose))
    cnt = {}
    def skip(x, g=0):
        if g >= 112:
            cnt[x.op] = cnt.get(x.op, 0) + 1
            if 'Q' in dg and x.op == 'ds_read_b128' and x.text.split()[1][0] == 'a' and cnt[x.op] % 2: return True
            if 'D' in dg and x.op == 'ds_read_b32' and cnt[x.op] % 2: return True
            if 'V' in dg and x.op == 'v_perm_b32' and cnt[x.op] % 2: return True
            if 'L' in dg and x.text.endswith('lds') and cnt[x.op] % 2: return True
        if g >= P2:
            if '1' in dg and x.op == 's_barrier': return True
            if '2' in dg and x.op.startswith('ds_write'): return True
            if '3' in dg and x.op == 'buffer_store_dwordx4': return True
            if '4' in dg and x.op in ('v_mul_f32', 'v_add_f32', 'v_cvt_pk_bf16_f32'): return True
            if '5' in dg and x.op.startswith('ds_read') and x.text.split()[1][0] == 'v': return True
        if 'e' in dg and x.op == 'buffer_store_dword': return True
        if 'a' in dg and x.op == 'buffer_atomic_add': return True
        if 's' in dg and 'store' in x.op and ('s62' in x.text or 's60' in x.text): return True
        if 'c' in dg and x.op in ('v_bitop3_b32', 'v_cmp_lt_u32', 's_cbranch_vccnz'): return True
        if 'l' in dg and 's[4:7]' in x.text: return True
        if 'x' in dg and x.text.endswith('lds'): return True
        if 'y' in dg and 'load' in x.op and 's[12:15]' in x.text: return True
        if 'b' in dg and x.op == 's_barrier': return True
        return False
    def emit(s, g):
        for it in L.items(g):
            r = it.fn()
            for x in (r if isinstance(r, list) else [r]):
                if skip(x, g): continue
                if 'p' in dg and 'load' in x.op: x = I(x.text.replace(' sc1', ''), defs=x.defs, uses=x.uses)
                s(x)

    s = Stream()
    def stamp(k):
        if stamps: s(f's_waitcnt lgkmcnt(0)\ns_memtime s[100:101]\ns_waitcnt lgkmcnt(0)\ns_sub_u32 s{(96, 97, 53, 54)[k]}, s100, s82')
    s('s_cmp_ge_u32 s2, 256\ns_cbranch_scc1 L_end')
    if skew:
        s('s_memrealtime s[80:81]\ns_waitcnt lgkmcnt(0)\ns_lshr_b32 s82, s80, 12\ns_lshl_b32 s82, s82, 3\ns_and_b32 s83, s2, 7\ns_add_u32 s82, s82, s83')
        s(f's_mul_i32 s82, s82, 0x9e3779b1\ns_lshr_b32 s83, s82, 15\ns_xor_b32 s82, s82, s83\ns_mul_i32 s82, s82, 0x85ebca6b\ns_mul_hi_u32 s82, s82, {skew}\ns_add_u32 s82, s82, s80')
        s('L_skew:\ns_memrealtime s[80:81]\ns_waitcnt lgkmcnt(0)\ns_cmp_lt_u32 s80, s82\ns_cbranch_scc1 L_skew')
    if stamps: s('s_memrealtime s[80:81]\ns_memtime s[82:83]')
    s('s_load_dwordx2 s[4:5], s[0:1], 8\ns_load_dwordx2 s[12:13], s[0:1], 48\ns_load_dwordx2 s[8:9], s[0:1], 0\ns_load_dwordx2 s[28:29], s[0:1], 16')
    s(f's_getpc_b64 s[48:49]\nL_pc:\ns_mov_b32 s50, CODE_BYTES\ns_mov_b32 s51, 0x20000')
    s('s_lshr_b32 s61, s2, 3\nv_lshl_add_u32 v46, v0, 5, s61\nv_lshlrev_b32 v46, 7, v46')
    s('buffer_load_dword v1, v46, s[48:51], 0 offen offset:256')
    lm = {2: 1, 4: 2, 8: 3, 16: 4}[xm]
    gm = 16 // xm; lgm = 4 - lm
    s('v_lshrrev_b32 v5, 6, v0\nv_and_b32 v2, 63, v0')
    s('s_and_b32 s60, s2, 7')
    s('v_readfirstlane_b32 s63, v5')
    s(f's_and_b32 s58, s60, {gm-1}\ns_lshl_b32 s58, s58, {lm}\ns_and_b32 s62, s61, {xm-1}\ns_add_u32 s58, s58, s62')
    s(f's_lshr_b32 s59, s60, {lgm}\ns_lshl_b32 s59, s59, {5-lm}\ns_lshr_b32 s62, s61, {lm}\ns_add_u32 s59, s59, s62')
    s('v_mul_u32_u24 v18, 12, v2')
    s('s_lshl_b32 s60, s63, 4\ns_add_u32 s60, s60, s58')
    s(f's_mul_i32 s61, s60, {8*QROW}\ns_mul_i32 s79, s59, 896\ns_add_u32 s61, s61, s79')
    s(f's_mov_b32 s6, {K*QROW}\ns_mov_b32 s7, 0x20000')
    s(f's_lshl_b32 s78, s59, 7\ns_add_u32 s78, s78, {EOFF + 12}')
    s('v_and_b32 v4, 15, v2\nv_lshrrev_b32 v3, 4, v2')
    s('v_and_b32 v12, 1, v3\nv_lshlrev_b32 v13, 1, v12\nv_xor_b32 v13, v13, v4\nv_lshrrev_b32 v19, 1, v3\nv_lshl_add_u32 v19, v19, 4, v13')
    s(f's_bfe_u32 s70, s58, 0x10002\ns_xor_b32 s70, s70, 1\nv_xor_b32 v12, s70, v12\nv_mul_u32_u24 v12, {QROW}, v12\nv_add_lshl_u32 v19, v19, v12, 2\nv_add_u32 v19, 768, v19')
    progs = list(dict.fromkeys(roles)); rid = [progs.index(r) for r in roles]
    s(f's_mov_b32 s46, {rid[3]}')
    for w_ in range(3):
        if rid[w_] != rid[3]: s(f's_cmp_lg_u32 s63, {w_}\ns_cbranch_scc1 L_role{w_}\ns_mov_b32 s46, {rid[w_]}\nL_role{w_}:')
    nst = 0 if test_help or 's' in dg else 1
    neg = Stream()
    for g in range(-60, 0): emit(neg, g)
    neg = neg.l
    def set_d(s):
        s('v_lshlrev_b32 v16, 1, v4\nv_lshrrev_b32 v17, 4, v0\nv_lshlrev_b32 v17, 1, v17')
        s(f's_mov_b32 s30, 32\ns_mov_b32 s31, 0x20000')
        s('v_lshrrev_b32 v6, 3, v2\nv_and_b32 v7, 7, v2\nv_xor_b32 v13, v7, v3')
        s('s_lshl_b32 s70, s63, 5\nv_add_lshl_u32 v12, v6, s70, 11')
        s('v_lshl_add_u32 v36, v13, 4, v12\nv_xor_b32 v37, 64, v36')
        s(f'v_add_u32 v37, {8*2048-1024}, v37')
        if rot is None: s(f'v_add_u32 v38, {2*(8*2048-1024)}, v36\nv_add_u32 v39, {2*(8*2048-1024)}, v37')
        s(f's_mov_b32 s10, {M*K*2}\ns_mov_b32 s11, 0x20000')
        s('s_lshl_b32 s55, s58, 18\ns_and_b32 s71, s58, 8\ns_lshl_b32 s70, s71, 4\ns_add_u32 s55, s55, s70\ns_lshl_b32 s57, s63, 12')
        if rot is None: s(f's_xor_b32 s69, s55, 128\ns_add_u32 s57, s57, {RING}')
        else: s(f's_and_b32 s70, s59, {rot & 1}\ns_lshl_b32 s71, s70, 15\ns_xor_b32 s55, s55, s71\ns_lshl_b32 s71, s70, 11\ns_xor_b32 s57, s57, s71')
    def set_n(s):
        s(f's_mov_b32 s14, {WSUSE}\ns_mov_b32 s15, 0x20000')
        s('s_lshl_b32 s68, s59, 17\ns_lshl_b32 s62, s60, 10\ns_add_u32 s62, s62, s68\nv_lshlrev_b32 v20, 4, v2')
    def set_s(s):
        s('s_and_b32 s64, s63, 1\ns_lshr_b32 s65, s63, 1')
        s('s_and_b32 s70, s58, 8\ns_lshl_b32 s70, s70, 10\ns_lshl_b32 s71, s64, 12\ns_add_u32 s70, s70, s71\ns_lshl_b32 s71, s63, 8\ns_add_u32 s70, s70, s71\ns_add_u32 s70, s70, s68')
        s('v_lshl_add_u32 v32, v4, 4, s70\nv_lshl_add_u32 v32, v3, 10, v32\nv_xor_b32 v33, 4096, v32\nv_xor_b32 v34, 8192, v32\nv_xor_b32 v44, 12288, v32')
        for b in range(4): s(f's_mov_b32 s{36+b}, {0x0c0c0000 | ((4+b) << 8)}')
        s('v_and_b32 v35, 31, v2\nv_lshlrev_b32 v35, 2, v35')
        s(f's_lshl_b32 s70, s64, 6\ns_add_u32 s70, s70, {RING}')
        s('v_lshrrev_b32 v12, 1, v4\nv_xor_b32 v12, v12, v3\nv_lshlrev_b32 v12, 4, v12\nv_lshl_add_u32 v12, v4, 7, v12')
        s('v_xor_b32 v40, s70, v12\nv_xor_b32 v41, 64, v40\nv_add_u32 v42, 65536, v40\nv_add_u32 v43, 65536, v41')
        s('s_mov_b32 s52, 0')
        if cpf2: s('v_add_u32 v45, 16384, v46')
        if rot is not None: s(f's_and_b32 s70, s59, {rot & 2}\ns_lshl_b32 s71, s70, 6\ns_xor_b32 s69, s55, s71\ns_lshl_b32 s71, s70, 13\ns_xor_b32 s60, s57, s71')
    sets = {'d': set_d, 'n': set_n, 's': set_s}
    for ch in pre: sets[ch](s)
    s('s_waitcnt lgkmcnt(0)')
    s('s_load_dword s76, s[12:13], s78')
    def pt(s, ch):
        if pticks and ch in pticks: s(f's_memtime s[{84+2*pticks.index(ch)}:{85+2*pticks.index(ch)}]')
    pt(s, '0')
    def emit_dma(s, it, a=0, b=8):
        for m0, so, d in dma(it)[a:b]:
            if m0: s(m0)
            if so: s(so)
            s(d)
    def block(ch):
        s = Stream()
        if ch == 'X':
            for e, sh in rows:
                s((sh_load if sh else own_load)(128 + 4*e))
                if sh or e > 3: s(f's_add_u32 s61, s61, {QROW if e < 7 else (512 - 7)*QROW}')
        if ch == 'L':
            if 'd' not in pre: set_d(s)
            s('buffer_load_ushort v16, v16, s[28:31], 0 offen\nbuffer_load_ushort v17, v17, s[28:31], 0 offen')
        if ch == 'D': emit_dma(s, 0, 0, 4)
        if ch == 'd': emit_dma(s, 0, 4, 8)
        if ch == 'S':
            s('s_load_dwordx2 s[32:33], s[0:1], 24\ns_load_dwordx2 s[16:17], s[0:1], 32\ns_load_dwordx2 s[24:25], s[0:1], 40')
            for c_ in 'ns':
                if c_ not in pre: sets[c_](s)
            for y in late_l: s(I(y.text.replace('v16', 'v12').replace('v17', 'v13')))
            s('v_lshlrev_b32 v8, 4, v7\nv_lshl_add_u32 v8, v0, 8, v8')
            for j in range(1, 8): s(f'v_xor_b32 v{8 + j}, {16*j}, v8')
        if ch == 'G': s(f's_waitcnt lgkmcnt(0)\ns_add_u32 s76, s76, {TAGC}\ns_and_b32 s47, s76, 0xffff0000')
        if ch == 'K':
            for x in pack([128 + 4*e for e in range(8)]): s(x)
            if nst: s(own_store(128))
            s(f's_add_u32 s62, s62, {64*PROW}')
        if ch == 'T':
            if fsync: s('v_mov_b32 v45, 0'); s('ds_write_b32 v35, v45 offset:128', defs={'tbl'}); s('v_mov_b32 v45, 1')
            for r in range(56, 60): s(f'v_lshl_or_b32 v{r}, v17, 16, v16')
            for j in range(8): s(f'ds_write_b128 v{8 + j}, v[56:59]', defs={'tbl'})
        if ch == 'W' and pads: s('L_WARM:')
        if ch == 'B': s('s_barrier', uses={'tbl', 'dma00'} | (set() if 0 in split else {'dma01'}))
        if ch in 'Pp':
            for st in range(2): s(cload((0, int(ch == 'p')), st))
        if ch == 'Q':
            for x in neg:
                if x.op == 'ds_read_b128': s(x)
        if ch == 'F':
            s('s_lshl_b32 s70, s59, 3\ns_lshl_b32 s71, s58, 7\ns_add_u32 s70, s70, s71\ns_lshl_b32 s70, s70, 11')
            s(f'v_lshlrev_b32 v27, 7, v7\nv_lshl_add_u32 v27, v6, 11, v27\nv_add_u32 v21, {8 - xf}, v7\nv_lshrrev_b32 v21, 3, v21\nv_lshl_add_u32 v27, v21, 30, v27')
            s('buffer_load_dword v27, v27, s[8:11], s70 offen')
        if ch == 'E': emit_dma(s, 1, 0, dma1)
        pt(s, ch)
        return s.l
    blocks = {ch: block(ch) for ch in layout}
    head = s.l
    s = Stream()
    s('L_chk0:')
    for x in chk((0, 0), 12): s(x)
    s('s_cbranch_vccnz L_retry0')
    pt(s, 'C')
    if plate == 1:
        for st in range(2): s(cload((0, 1), st))
    pv = [x for x in neg if x.kind == 'V']
    dd = [x for x in neg if x.op == 'ds_read_b32']
    assert len(pv) + len(dd) + 16 == len(neg)
    assert len(set(tuple(x.w) for x in pv[:8])) == 8 and len(set(tuple(x.w) for x in pv[8:])) == len(pv) - 8
    for x in pv[:8] + dd[:8] + pv[8:] + dd[8:]: s(x)
    if plate == 2:
        for st in range(2): s(cload((0, 1), st))
    if chk0all:
        for x in chk((0, 1), 12): s(x)
    stamp(0)
    s('s_cbranch_vccz L_main')
    s('L_retry0:')
    n0 = len(s.l)
    if stamps: s('s_or_b32 s52, s52, 0x10000')
    s(f's_add_u32 s52, s52, 1\ns_and_b32 s23, s52, {SPIN - 1}\ns_cbranch_scc1 L_retry0b\ns_mov_b32 s22, {kap[0]}\ns_call_b64 s[20:21], L_help\nL_retry0b:')
    for k in range(4 if 'p' in layout else 2): s(cload((0, k // 2), k % 2))
    s('s_waitcnt vmcnt(0) lgkmcnt(0)\ns_branch L_chk0')
    def stubs(o):
        o(f'L_tick:\ns_add_u32 s52, s52, 1\ns_and_b32 s23, s52, {SPIN - 1}\ns_cbranch_scc0 L_help\ns_setpc_b64 s[20:21]')
        for c in sorted(corder, key=lambda c: (c[0] % 4, c)):
            if c not in cbr: continue
            nm = f'{c[0]}_{c[1]}'
            o(f'L_slow{nm}:')
            if stamps: o(f's_or_b32 s52, s52, {1 << (16 + c[0])}')
            o(f's_mov_b32 s22, {c[0]}\ns_call_b64 s[20:21], L_tick')
            o(cload(c, 0)); o(cload(c, 1))
            o('s_waitcnt vmcnt(0)')
            for x in chk(c, 12): o(x)
            o(f's_cbranch_vccnz L_slow{nm}\ns_branch L_back{nm}')
    if near: stubs(s)
    for x in s.l[n0:]: x.role = (2,)
    if pads: s('.p2align 12')
    s('L_main:')
    for g in range(NG):
        t, i, w, x, o_ = mf[g]
        c = ACC(t, i)
        src = '0' if g == afirst[(t, i)] else f'v[{c}:{c+3}]'
        A, B = areg[w], xreg[x] + o_
        s(f'v_mfma_f32_16x16x32_bf16 v[{c}:{c+3}], a[{A}:{A+3}], a[{B}:{B+3}], {src}')
        if g in ticks: s(f's_mem{"real" if rt else ""}time s[{84+2*ticks.index(g)}:{85+2*ticks.index(g)}]')
        if g == P2 - 1 and stamps: s('s_memrealtime s[14:15]'.replace('14:15', '98:99'))
        if g == P2 - 1 and not ticks: stamp(1)
        if g == NG - 1 and not ticks: stamp(2)
        emit(s, g)
        if pause and g in pause:
            for _ in range(pause[g] // 64): s('s_nop 15')
        if dnop and dnop[0] <= g < dnop[1] and g % dnop[2] == 0: s('s_nop 7')
    for g in range(NG, max(L.g) + 1): emit(s, g)
    stamp(3)
    tail = s.l
    hot = [x for x in tail if not hasattr(x, 'role')]
    need = {}
    for r, prog in enumerate(progs):
        lin = list(head)
        for ch in prog: lin += [I(f's_waitcnt vmcnt({clk})')] if ch == 'c' else blocks[ch]
        lin += hot
        own = set(map(id, lin)); out = insert_waits(lin, age_l=age_l, hmin=hmin); verify_waits(out)
        for a, b in zip(out, out[1:]):
            if id(a) not in own:
                m1 = re.search(r'vmcnt\((\d+)\)', a.text); m2 = re.search(r'lgkmcnt\((\d+)\)', a.text)
                need.setdefault(id(b), {})[r] = (int(m1.group(1)) if m1 else 99, int(m2.group(1)) if m2 else 99)
    nlab = [0]
    def with_waits(l, users, inloop=False, prim=None):
        o = []
        for x in l:
            if x.text == 'L_main:': inloop = True
            d = need.get(id(x))
            if d:
                lg = min(v[1] for v in d.values()); vm = {r: d.get(r, (99, 99))[0] for r in users}
                if inloop: vm = {r: min(vm.values()) for r in users}
                if prim is not None: vm = {r: vm[prim] for r in users}
                lv = sorted(set(vm.values()), reverse=True)
                t = ' '.join(([f'vmcnt({lv[0]})'] if lv[0] < 99 else []) + ([f'lgkmcnt({lg})'] if lg < 99 else []))
                if t: o.append(I('s_waitcnt ' + t))
                if len(lv) > 1:
                    nlab[0] += 1
                    for hi, lo in zip(lv, lv[1:]):
                        for r in users:
                            if vm[r] == hi: o += [I(f's_cmp_eq_u32 s46, {r}'), I(f's_cbranch_scc1 L_rw{nlab[0]}')]
                        y = I(f's_waitcnt vmcnt({lo})'); y.only = [r for r in users if vm[r] <= lo]; o.append(y)
                    o.append(I(f'L_rw{nlab[0]}:'))
            o.append(x)
        return o
    allr = list(range(len(progs)))
    def edge(frm, nxt_layout):
        o = []; tg = {}
        for r, prog in enumerate(progs):
            if frm is not None and frm not in prog: continue
            k = 0 if frm is None else prog.index(frm) + 1
            w_ = None
            if k < len(prog) and prog[k] == 'c': w_ = clk; k += 1
            to = prog[k] if k < len(prog) else '$'
            if to == 'K' and r != kprim:
                w_ = min(v[r][0] for n, x in enumerate(blocks['K']) for v in [need.get(id(x), {})] if r in v) if any(r in need.get(id(x), {}) for x in blocks['K']) else w_
            tg[r] = (to, w_)
        rs = sorted(tg, key=lambda r: tg[r][0] == nxt_layout)
        for n, r in enumerate(rs):
            to, w_ = tg[r]; last = n == len(rs) - 1 or all(tg[q] == tg[r] for q in rs[n:])
            lbl = 'L_chk0' if to == '$' else f'L_{to}'
            if last:
                if w_ is not None: y = I(f's_waitcnt vmcnt({w_})'); y.only = rs[n:]; o.append(y)
                if to != nxt_layout: o.append(I(f's_branch {lbl}'))
                break
            if w_ is None: o += [I(f's_cmp_eq_u32 s46, {r}'), I(f's_cbranch_scc1 {lbl}')]
            else:
                nlab[0] += 1; y = I(f's_waitcnt vmcnt({w_})'); y.only = [r]
                o += [I(f's_cmp_lg_u32 s46, {r}'), I(f's_cbranch_scc1 L_ed{nlab[0]}'), y, I(f's_branch {lbl}'), I(f'L_ed{nlab[0]}:')]
        return o
    fin = {None: with_waits(head, allr) + edge(None, layout[0])}
    for n, ch in enumerate(layout):
        users = [r for r in allr if ch in progs[r]]
        fin[ch] = [I(f'L_{ch}:')] + with_waits(blocks[ch], users, prim=kprim if ch == 'K' else None) + edge(ch, layout[n + 1] if n + 1 < len(layout) else '$')
    ftail = with_waits(tail, allr)
    for r, prog in enumerate(progs):
        lin = fin[None] + [x for ch in prog if ch != 'c' for x in fin[ch]] + [x for x in ftail if not hasattr(x, 'role')]
        lin = [x for x in lin if r in getattr(x, 'only', [r])]
        verify_waits(lin)
    st = fin[None] + [x for ch in layout for x in fin[ch]] + ftail
    st, probs = check_hazards(st, fix=True)
    if verbose:
        for p in probs: print('  nop:', p)
    lab = {x.text[:-1]: k for k, x in enumerate(st) if x.kind == 'L' and x.text.endswith(':')}
    m0 = lab['L_main'] + 1
    sz = sizes(st[m0:])
    tot = sum(sz)
    if pads:
        pos = [m0]; addr = 4; nxt = 4096; best = None; fill = 0
        for k, x in enumerate(st[m0:]):
            if addr >= nxt and (x.kind == 'M' or fill > 6) and x.kind != 'L':
                if addr <= nxt + 56:
                    if best is None or fill < best[0]: best = (fill, m0 + k)
            if addr > nxt + 56:
                assert best, 'no pad position'
                pos.append(best[1]); addr += 4; nxt += 4096; best = None
            fill = 0 if x.kind == 'M' else fill + (x.kind != 'L')
            addr += sz[k]
        if addr + 4 > nxt: pos.append(best[1] if best else len(st))
        npad = len(pos)
        assert npad <= 6
        first = warm
        for n, p in reversed(list(enumerate(pos))):
            st[p:p] = [I(f'L_pad{n}:'), I(f's_cbranch_execz {"L_warmed" if n + 1 in first.values() or n == npad - 1 else f"L_pad{n+1}"}')]
        w = [I('s_mov_b64 exec, 0')]
        for wv_, k in first.items():
            if k < npad: w += [I(f's_cmp_eq_u32 s63, {wv_}'), I(f's_cbranch_scc1 L_pad{k}')]
        w += [I('L_warmed:'), I('s_mov_b64 exec, -1')]
        st[lab['L_WARM']:lab['L_WARM'] + 1] = w
    nfill = {}; cur = None
    for x in st:
        if x.kind == 'M':
            if cur is not None: nfill[cur] = nfill.get(cur, 0) + 1
            cur = 0
        elif cur is not None and x.kind != 'L': cur += 1
    if verbose: print('  fillers/gap histogram', sorted(nfill.items()), 'loop bytes', tot)
    body = render(st).replace('CODE_BYTES', 'L_code_end-L_pc')
    if stamps:
        a = Asm()
        a('s_memrealtime s[78:79]\ns_waitcnt vmcnt(0) lgkmcnt(0)\ns_sub_u32 s78, s78, s80')
        a('s_sub_u32 s98, s98, s80')
        ex = [(96, 79), (54, 79)]
        if pticks:
            for k in range(6): a(f's_sub_u32 s{40+k}, s{84+2*k}, s82')
            ex += [(40+k, 79) for k in range(6)]
        for k in range(len(ticks)): a(f's_sub_u32 s{40+k}, s{84+2*k}, s{80 if rt else 82}')
        ex += [(40+k, 79) for k in range(len(ticks))]
        if not ticks: ex += [(97, 79), (53, 79)]
        ex += [(98, 79), (78, 79), (52, 79)]
        a('s_mov_b32 s79, 0')
        if swave: a(f'v_xor_b32 v0, {64*swave}, v0')
        stamp_end(a, 80, 64, 2, 8, nst=4+len(ex), extra=ex)
        body += a.text()
        if verbose: print('  nstamp', 4 + len(ex))
    body += 'L_end:\n    s_endpgm\n'
    o = Stream()
    if not near: stubs(o)
    for n_, (spec, cm) in enumerate(syn):
        o(f'L_sy{n_}:')
        for y in spec: o(y.fn().text)
        o('s_waitcnt lgkmcnt(0)'); o(cm.fn().text)
        o(f's_cbranch_vccnz L_sy{n_}\ns_branch L_syb{n_}')
    o('L_help:\ns_mov_b32 s53, s61\ns_mov_b32 s54, s62')
    o(f's_mul_i32 s61, s22, {128*QROW}\ns_add_u32 s61, s61, s79')
    o('s_lshl_b32 s62, s22, 14\ns_add_u32 s62, s62, s68')
    o('s_mov_b32 s22, 0')
    o('L_help_row:')
    o('v_mov_b32 v21, v19\ns_xor_b32 s23, s22, s58\ns_bitcmp0_b32 s23, 2\ns_cbranch_scc1 L_help_same')
    o(f'v_add_u32 v12, {4*QROW}, v19\nv_subrev_u32 v13, {4*QROW}, v19\nv_min_u32 v21, v12, v13\nL_help_same:')
    o('v_mov_b32 v8, 0\nv_mov_b32 v9, 0\nv_mov_b32 v10, 0\nv_mov_b32 v11, s47\ns_mov_b32 s23, 0')
    o('L_help_e:')
    o('v_mov_b32 v15, 0')
    o(own_load(12))
    o('s_cmp_ge_u32 s23, 16\ns_cbranch_scc1 L_help_own')
    o(sh_load(12, 21))
    o('L_help_own:\ns_waitcnt vmcnt(0)')
    for c in range(4): o(f'v_lshl_or_b32 v{8+c}, v{12+c}, s23, v{8+c}')
    o(f's_add_u32 s61, s61, {QROW}')
    o('s_add_u32 s23, s23, 4\ns_cmp_lt_u32 s23, 32\ns_cbranch_scc1 L_help_e')
    o(own_store(8))
    o(f's_add_u32 s62, s62, {PROW}')
    o('s_waitcnt vmcnt(0)')
    o('s_add_u32 s22, s22, 1\ns_cmp_lt_u32 s22, 16\ns_cbranch_scc1 L_help_row')
    o('s_mov_b32 s61, s53\ns_mov_b32 s62, s54')
    o('s_setpc_b64 s[20:21]')
    body += render(o.finish(verbose=False)) + 'L_code_end:\n'
    return body

NOTES = """;
; Weights: the 16 workgroups of a column group pack the int32 codes cooperatively, 8 codes per word, into d_ws (write-through stores).
;   granules of earlier launches never match. Consumers check the tags of every load and re-load until they match; a wave that waits too
;   long packs the missing K block itself, so no residency or placement is assumed. The last workgroup of a group to count itself in
; x tile: LDS-DMA ring of three K128 stages (XOR-swizzled). The last K blocks run row tile by row tile with the weights held in registers,
;   so scaling, bf16 conversion, LDS staging and the output stores overlap the MFMAs.
; L_pad*: branch pads at the 4 KiB code pages, visited once with EXEC = 0 (branches only) to get those lines into the instruction cache.
"""
def build(**kw):
    return single(gemm_kernel(**kw), 256, 256, 163840, vgpr=512, accum=256, sgpr=102, notes=NOTES)
def kdict(**kw):
    return dict(name=KNAME, body=gemm_kernel(**kw), grid=256, block=256, lds=163840, vgpr=512, accum=256, sgpr=102)
if __name__ == '__main__':
    open('standalone__normalfloat_lut_af4__prompt.s', 'w').write(build())
```

```python
import sys, subprocess, re
sys.path.insert(0, 'tools')
from asmlib import *
from sched import *

M, K, N = 2048, 1024, 3584
QROW = N * 4
RS = 464
RING = 65536
NIT = 8
PROW = 1024
PNT = 128 * PROW
EOFF = 16 * PNT
WSUSE = EOFF + 16 * 128
TAGC = 0x9e3779b9
SPIN = 4096

def sizes(st):
    txt = '.amdgcn_target "amdgcn-amd-amdhsa--gfx950"\n.text\n'
    for x in st:
        if x.kind == 'L': continue
        t = x.text
        if x.op.startswith('s_cbranch') or x.op == 's_branch': t = x.op + ' 0'
        txt += t + '\n'
    open('_sz.s', 'w').write(txt)
    r = subprocess.run(['llvm-mc', '-triple=amdgcn-amd-amdhsa', '-mcpu=gfx950', '-show-encoding', '_sz.s'], capture_output=True, text=True)
    assert r.returncode == 0, r.stderr[:500]
    enc = [len(m.split(',')) for m in re.findall(r'encoding: \[(.*?)\]', r.stdout)]
    out = []; k = 0
    for x in st:
        if x.kind == 'L': out.append(0)
        else: out.append(enc[k]); k += 1
    assert k == len(enc)
    return out

def gemm_kernel(skew=0, stamps=False, pticks=None, ticks=(), rt=False, dg='', pause=None, swave=0, test_help=False, verbose=True,
                aux_out='sc1', xm=4, LA_P=110, LAT_P=60, g_p=(0, 1, 60, 110), LA_X=220, LAT_X=60, dma_sp=4, dma1=0,
                rB=(2, 4, 60), rvis=(85, 140), gK=159, gKh=160, pads=True, nf6=1, gbm=16, lsl=20, split=(0, 1, 2), ybar=32, chk0all=False,
                bar_at=60, bar0=76, gsp=4, wv=False, ban='', dhard=7, ovf=12, age_l=9, DL=4, bw=5, lateset=90, g_sc=470,
                pre='dn', layout='XLDSGKTWBQPdE', roles=('XLDSGKTWBQPdE', 'LSXDGTKBQPdE', 'LSDGTXBQPdKE', 'LSDGTXBQPdKE'), clk=4, warm={0: 0},
                fifo=(52, 32, 0.23, 0.15, 75, 4, 30), lk0=0, xdue=15, pdue=30, rdue=0, rbw=0, xds=0, grp=(1,1,1,1,1,1,1,1), tsp=4, rl=7, knee=None, ovf1=None, shift=True, snake=True, n5=7, plate=1, ychk=24, kprim=0, xf=0, b7=False, rot=None, cpf2=None, aux_q='nt', aux_x='', addtid=True, wsp=0, fsync=None, near=True, g_at=600, g_ep=120, asl=0, atb=True, mix=4, follow=0, hmin=5, k1=(116, 1), credit=1):
    S = 2; dnop = None; aux_last = None
    kap = tuple(range(8))
    ACC = lambda t, i: 128 + (t * 8 + i) * 4
    slot = lambda it: (it + 1) % 3
    P1 = NIT - S
    mf = []
    def own(it, b, t, i, rev=False):
        for st in ((1, 0) if rev else (0, 1)): mf.append((t, i, (it, b, st, t), (it, b, i), 4*st))
    def shr(it, b, i): mf.append((3, i, (it, b, 0, 3), (it, b, i), 2))
    for it in range(P1):
        for b in range(2):
            nt_ = n5 if it == 5 else 8
            for t in range(3):
                for i in range(nt_): own(it, b, t, i, snake and i % 2)
            for i in range(nt_):
                if it in split: shr(it, b, i)
                elif b == 0:
                    for b2 in ((1, 0) if snake and i % 2 else (0, 1)): shr(it, b2, i)
    P2 = len(mf)
    def chain(t, i, its):
        for it in its:
            for b in range(2): shr(it, b, i) if t == 3 else own(it, b, t, i)
    for t in (3, 0, 1, 2):
        for i in range(nf6): chain(t, i, (6,))
    for i in range(8):
        for t in (3, 0, 1, 2): chain(t, i, (7,) if i < nf6 else (6, 7) if i < n5 else (5, 6, 7))
    NG = len(mf)
    assert NG == 896
    wfirst, wlast, xfirst, xlast, alast, afirst = {}, {}, {}, {}, {}, {}
    for g, (t, i, w, x, o) in enumerate(mf):
        wfirst.setdefault(w, g); wlast[w] = g; xlast[x] = g; alast[(t, i)] = g; afirst.setdefault((t, i), g)
        for st in range(2):
            if o == 2 or o == 4*st: xfirst.setdefault((x[0], x[1], st, x[2]), g)
    L = ListSched2(NG, gsp, ban, ovf, wv, fifo)
    areg = {}; qreg = {}; treg = {}
    xiv = {}; xreg = {}; aiv = {}; qiv = {}; tiv = {}
    def live(d, k, *its): d.setdefault(k, []).extend(its)
    PRE = -1000
    vis = {}; bar = {}
    for it in range(P1):
        bar[it] = vis[it + 1, 0] = vis[it + 1, 1] = L.add('B', lambda it=it: I('s_barrier', uses={f'q{it}', f'dma{it+1}0'} | (set() if it + 1 in split else {f'dma{it+1}1'})),
                                                         112*it + (bar0 if it == 0 else bar_at if it < 5 else bar_at * n5 // 8), slack=2, name=f'B{it}')
    if b7: bar[6] = vis[7, 0] = vis[7, 1] = L.add('B', lambda: I('s_barrier', uses={'dma70', 'dma71'}), P2 + 14*nf6 - 26, slack=2, name='B7')
    else:
        bar[6] = vis[7, 0] = vis[7, 1] = bar[5]; bar[5].target += 12
        bar[5].fn = lambda: I('s_barrier', uses={'q5', 'dma60', 'dma61', 'dma70', 'dma71'})
    for it in split: vis[it, 1] = L.add('B', lambda it=it: I('s_barrier', uses={f'dma{it}1'}), 112*it + ybar, slack=2, name=f'Y{it}')
    def qread(x):
        it, b, st, i = x
        sl = slot(it)
        base = 40 + (2 if sl == 2 else 0) + st
        off = (0 if sl == 2 else sl*32768) + b*16384 + i * 2048
        k = (it, b, i)
        return lambda: I(f'ds_read_b128 a[{xreg[k]+4*st}:{xreg[k]+4*st+3}], v{base} offset:{off}', defs={f'q{it}'})
    def addq(x, nom):
        it = L.add('Q', qread(x), nom, hard=xfirst[x] - dhard, preds=[(vis[x[:2]], 0)] if x[:2] in vis else [], slack=6, name=f'Q{x}')
        live(xiv, (x[0], x[1], x[3]), it, xlast[(x[0], x[1], x[3])])
        return it
    for it in range(P1):
        for b in range(2):
            for k in range(2*(n5 if it == 5 else 8)):
                q = addq((it, b, k % 2, k // 2), 112*it + ((ybar + 1 + 2*k if it in split else 1 + 3*k) if b else -47 + 3*k))
                if b: bar[it].preds.append((q, 8))
    xs = sorted([x for x in xfirst if xfirst[x] >= P2], key=lambda x: xfirst[x])
    for k, x in enumerate(xs): addq(x, min(P2 - 34 + int(3.5*k), xfirst[x] - 12))
    def dma(it):
        out = []
        for half in range(2):
            for j in range(4):
                if rot is None:
                    m0 = f's_add_u32 m0, s57, {slot(it)*32768 + half*16384}' if j == 0 else None
                    so = f's_add_u32 s{(56, 3)[half]}, s{(55, 69)[half]}, {256*it}' if j == 0 else None
                    out.append((m0, so, I(f'buffer_load_dwordx4 v{36+j}, s[8:11], s{(56, 3)[half]} offen offset:{j*1024} {aux_x} lds', defs={f'dma{it}{half}'})))
                else:
                    pr_, sp_ = j // 2, it in split
                    m0 = f's_xor_b32 m0, s{57 if sp_ else 60}, {(RING + slot(it)*32768) ^ half*16384 ^ pr_*2048}' if j % 2 == 0 else None
                    so = f's_xor_b32 s{(56, 3)[pr_]}, s{55 if sp_ else 69}, {256*it ^ half*128 ^ pr_*32768}' if j % 2 == 0 else None
                    out.append((m0, so, I(f'buffer_load_dwordx4 v{36+j%2}, s[8:11], s{(56, 3)[pr_]} offen offset:{j%2*1024} lds', defs={f'dma{it}{half}'})))
        return out
    hist = []
    npre = (8 + dma1) if 'd' in layout else 4
    for it in range(NIT):
        for k, (m0, so, d) in enumerate(dma(it)):
            if 8*it + k < npre: continue
            vb = vis[it, k // 4]
            t = max(vis[it, 0].target - LA_X, 3) + dma_sp*k if it > 1 else 1
            pr = [(hist[-1], 2)] if hist else []
            if it > 2: pr.append((bar[it - 3], 1))
            if m0: pr.append(L.add('S', lambda m0=m0: I(m0), max(t - 3, 0), preds=hist[-1:], slack=4))
            if so: pr.append(L.add('S', lambda so=so: I(so), max(t - 6, 0), preds=(hist[-5:-4] if len(hist) >= 5 else []) if rot is None else hist[-3:-2], slack=4))
            x = L.add('G', lambda d=d: d, t, preds=pr, slack=50 if it > 1 else 0, name=f'dma{it}.{k}')
            x.lines = 32; x.slow = 2*it >= xf; x.due = vb.target + (xdue if it < 6 or (b7 and it < 7) else -50 if it == 6 else 0) - (xds if it == 2 else 0)*(7 - k)
            vb.preds.append((x, LAT_X))
            hist.append(x)
    if cpf2:
        x = L.add('G', lambda: I('buffer_load_dword v1, v45, s[48:51], 0 offen offset:256'), cpf2, slack=0, name='C'); x.lines = 4; x.slow = False; x.due = cpf2
    def own_load(r): return f'buffer_load_dwordx3 v[{r}:{r+2}], v18, s[4:7], s61 offen {aux_q}'
    def sh_load(r, a=19): return f'buffer_load_dword v{r+3}, v{a}, s[4:7], s61 offen {aux_q}'
    tagged = lambda r: f'v_mov_b32_sdwa v{r}, s76 dst_sel:WORD_1 dst_unused:UNUSED_PRESERVE src0_sel:WORD_1'
    def pack(q):
        o = [f'v_lshl_or_b32 v{q[0]+c}, v{q[e]+c}, {4*e}, v{q[0]+c}' for e in range(1, 8) for c in range(4 if e < 4 else 3)]
        return o[:12] + [tagged(q[0] + 3)] + o[12:]
    def own_store(r): return f'buffer_store_dwordx4 v[{r}:{r+3}], v20, s[12:15], s62 offen sc1'
    rows = [(e, sh) for e in range(8) for sh in range(2 if e < 4 else 1)]
    g_r, sp, lat = rB
    ld = {}; prev = None
    for k, (e, sh) in enumerate(rows):
        pr = [prev]
        if e and not sh: pr.append(L.add('S', lambda: I(f's_add_u32 s61, s61, {QROW}'), 0, preds=[prev], slack=2))
        prev = x = ld[e, sh] = L.add('G', lambda e=e, sh=sh: I((sh_load if sh else own_load)(qreg[('B', e)])), g_r + sp*k, preds=pr, slack=25)
        x.lines = 8 if sh else 24; x.slow = True; x.due = gKh - rdue*(7 - e); x.bw = rbw / 3 if sh else rbw
    if gK:
        n1 = 0; b1 = None
        if k1:
            n1 = 4*k1[1]; assert 1 <= k1[1] <= 3
            b1 = L.add('B', lambda: [I(y) for y in pack([qreg[('B', e)] for e in range(8)])[:n1]] + (late_blk if lateset == 'block1' else []),
                       k1[0], hard=k1[0] + 1, preds=[(y, lat) for (e, sh), y in ld.items() if e <= k1[1]], slack=0)
            b1.must = 10**6; b1.credit = credit; b1.dur = n1 // 3 + (13 if lateset == 'block1' else 0)
        rdone = L.add('B', lambda: [I(y) for y in pack([qreg[('B', e)] for e in range(8)])[n1:] + [own_store(qreg[('B', 0)])]] + (late_blk if lateset == 'block' else []),
                      gK, hard=gKh, preds=[(y, lat) for y in ld.values()] + [b1], slack=0)
        rdone.must = 10**6; rdone.dur = 9 - n1 // 3 + (13 if lateset == 'block' else 0)
        for (e, sh), y in ld.items(): live(qiv, ('B', e), y, b1 if k1 and 0 < e <= k1[1] else rdone)
    else:
        x = None; seq = [(e, int(c == 3)) for e in range(1, 8) for c in range(4 if e < 4 else 3)]; seq.insert(12, (3, 1))
        for k, key in enumerate(seq):
            x = L.add('V', lambda k=k: I(pack([qreg[('B', e)] for e in range(8)])[k]), 0, preds=[(x, 0) if x else None, (ld[key], lat)], slack=10)
            live(qiv, ('B', key[0]), ld[key], x)
        rdone = L.add('G', lambda: I(own_store(qreg[('B', 0)])), 0, preds=[x], slack=2)
        live(qiv, ('B', 0), ld[0, 0], rdone)
    lk = [[w, q, None, 10**6, None] for w in sorted(wfirst, key=lambda w: (w[0], wfirst[w])) for q in range(4)]
    gb = max(wfirst.values()) - gbm
    nj = nh = 10**6
    for e in reversed(lk):
        w = e[0]
        nh = e[4] = min(wfirst[w] - dhard, nh - 1) if w[0] < P1 else wfirst[w] - dhard - (3 - e[1])
        if w[0] >= P1: nh = 10**6
        else: nj = min(wfirst[w] - 10 - w[2], nj - (2 if w[0] < 5 else n5 / 4)); e[3] = int(nj + 1000.99) - 1000
    j0 = sum(1 for e in lk if e[3] < lk0)
    pts = [(j0, lk0)] + [(j_, g_) for g_, j_ in (knee or [])] + [(len(lk) - 1, gb)]
    for j, e in enumerate(lk):
        if j < j0: e[2] = e[3]; continue
        (ja, ga), (jb, gb_) = next((a, b) for a, b in zip(pts, pts[1:]) if j <= b[0])
        e[2] = min(e[3], int(ga + (j - ja) * (gb_ - ga) / (jb - ja)))
    qk = lambda c, st: ('c', c[0], c[1], st)
    cfirst = {}; cjit = {}
    for w, q, g, jit, _ in lk: cfirst[w[:2]] = min(cfirst.get(w[:2], 10**9), g); cjit[w[:2]] = min(cjit.get(w[:2], 10**9), jit)
    sreg = ['0', 's40', 's41', 's42', 's43', 's44', 's45', 's72']
    def cload(c, st):
        r = qreg[qk(c, st)]
        return f'buffer_load_dwordx4 v[{r}:{r+3}], v{(32, 33, 34, 44)[2*c[1] + st]}, s[12:15], {sreg[c[0]]} offen sc1'
    def chk(c, t): return [f'v_bitop3_b32 v{t}, v{qreg[qk(c, 0)]+3}, v{qreg[qk(c, 1)]+3}, s76 bitop3:0x7e', f'v_cmp_lt_u32 vcc, 0xffff, v{t}']
    corder = sorted(cfirst)
    cbr = {}; sset = {it: L.add('S', lambda it=it: I(f's_mov_b32 {sreg[it]}, {16*PROW*it}'), 12*(it - 1), slack=3) for it in range(1, NIT)}
    for n, c in enumerate(corder):
        lds = []
        for st in range(2):
            if c == (0, 0) or (c == (0, 1) and ('p' in layout or plate)):
                live(qiv, qk(c, st), PRE + 2*n + st); continue
            t = max(cfirst[c] - LA_P + 3*st, 1, g_p[c[0]] if c[0] < 2 else g_p[2 + c[1]])
            pr = [sset.get(c[0])] + ([(rdone, rvis[c[1]])] if c[0] >= 4 else [])
            x = L.add('G', lambda c=c, st=st: I(cload(c, st)), t, preds=pr, slack=10, name=f'P{c}{st}')
            x.lines = 32; x.slow = False; x.due = min(cjit[c], cfirst[c] + pdue) - 10
            lds.append((x, LAT_P)); live(qiv, qk(c, st), x)
        nm = f'{c[0]}_{c[1]}'
        if c == (0, 0) or (c == (0, 1) and chk0all): continue
        x = L.add('V', lambda c=c: I(chk(c, treg[c])[0]), max(cfirst[c] - 13, ychk), preds=lds, slack=4)
        y = L.add('V', lambda c=c: I(chk(c, treg[c])[1]), 0, preds=[x], slack=2)
        live(tiv, c, x, y)
        cbr[c] = y.rel = L.add('E', lambda nm=nm: [I(f's_cbranch_vccnz L_slow{nm}'), I(f'L_back{nm}:')], 0, preds=[(y, 2)], slack=1)
    wo = lambda w: (('w', w[0], 3), 4*w[1]) if w[3] == 3 else (('w', w[0], w[1], w[3]), 4*w[2])
    dall = []
    for n, (w, q, g, jit, hard) in enumerate(lk):
        sl = max(3, min(lsl if not ovf1 or g > ovf1[0] else ovf1[1], jit - g + 3, (gb - g) // 3))
        st, sel = (q // 2, q % 2) if w[3] == 3 else (w[2], q)
        v = L.add('V', lambda n=n, w=w, st=st, sel=sel: I(f'v_perm_b32 v{treg[n]}, v{qreg[qk(w, st)] + w[3]}, v35, s{36+sel}'), g - 2, preds=[cbr.get(w[:2])], slack=sl)
        d = L.add('D', lambda n=n, w=w, q=q: I(f'ds_read_b32 a{areg[w]+q}, v{treg[n]}', defs={'lut'}), g, hard=hard, preds=[v], slack=3, name=f'D{w}{q}')
        d.must = wfirst[w] - 3; dall.append(d)
        if follow is not None: v.lead = (d, follow)
        live(tiv, n, v, d); live(xiv, wo(w)[0], d, wlast[w]); live(qiv, qk(w, st), v)
    STG = 1024; TB = 16*RS; EXB = STG + 7*TB
    xo_ = lambda i: (i - 3)*2048 if i >= 3 else RING + 16384 - EXB + i*2048
    assert EXB % 8 == 0 and EXB + 5*2048 <= RING and n5 >= 4
    so_ = lambda i: (i - 1)*TB if i else RING - STG
    s = Stream()
    s('s_mul_i32 s66, s63, 96\ns_lshl_b32 s67, s65, 5\ns_lshl_b32 s70, s64, 2\ns_add_u32 s67, s67, s70\ns_add_u32 s67, s67, 384')
    s('s_mul_i32 s71, s59, 448')
    s('s_add_u32 s70, s66, s71\nv_mad_u32_u24 v22, v3, 24, s70')
    s('s_add_u32 s70, s67, s71\nv_lshl_add_u32 v23, v3, 3, s70')
    s(f's_mov_b32 s34, {N*2}\ns_mov_b32 s35, 0x20000\ns_mov_b32 s26, 256\ns_mov_b32 s27, 0x20000\ns_lshl_b32 s77, s59, 4')
    s(f's_mov_b32 s18, {M*N*2}\ns_mov_b32 s19, 0x20000')
    s(f's_sub_u32 s70, {STG}, s71\nv_mul_u32_u24 v16, {RS}, v4')
    s('v_add3_u32 v26, v22, v16, s70\nv_add3_u32 v28, v23, v16, s70')
    if addtid: s(f's_lshl_b32 s70, s63, 9\ns_add_u32 s60, s70, {EXB}\ns_xor_b32 s70, s70, 512\ns_add_u32 s70, s70, {EXB}\nv_lshl_add_u32 v30, v2, 2, s70')
    else: s(f'v_lshlrev_b32 v29, 3, v0\nv_xor_b32 v30, 512, v29\nv_add_u32 v29, {EXB}, v29\nv_add_u32 v30, {EXB}, v30')
    s('v_mul_u32_u24 v16, 2341, v2\nv_lshrrev_b32 v16, 16, v16')
    s(f's_mul_i32 s73, s63, {4*RS}\ns_add_u32 s73, s73, {STG}')
    s('v_add_lshl_u32 v24, v2, v16, 4\nv_add_u32 v24, s73, v24')
    s(f's_lshl_b32 s74, s58, 7\ns_lshl_b32 s75, s63, 2\ns_add_u32 s74, s74, s75\ns_mul_i32 s74, s74, {N*2}\ns_add_u32 s74, s74, s71')
    s(f'v_mul_u32_u24 v17, {N*2 - 448}, v16\nv_lshl_add_u32 v25, v2, 4, v17')
    s('v_lshrrev_b32 v16, 1, v16\nv_lshlrev_b32 v16, 30, v16\nv_add3_u32 v25, v25, v16, s74')
    assert RS - 448 == 16 and all((l * 2341) >> 16 == l // 28 for l in range(64))
    s('v_mov_b32 v45, 1\nv_lshlrev_b32 v1, 22, v0\nv_mov_b32 v47, s76')
    assert WSUSE <= 1 << 22 and not fsync and not cpf2 and lateset != 'pre'
    late_l = s.l
    x = None
    for k, y in enumerate(late_l if lateset == 'loop' else []):
        x = L.add(y.kind, lambda y=y: y, 2*k, preds=[(x, 0 if x.kind == 'S' and y.kind == 'V' or x.kind == y.kind == 'V' else 1)] if x else [], slack=30)
    late_blk = late_l
    if isinstance(lateset, int): L.add('B', lambda: late_blk, lateset, slack=0).dur = 13
    if lateset != 'pre': late_l = []
    gs0 = g_sc
    s0 = L.add('G', lambda: I(f'buffer_load_dwordx4 v[{qreg["sp0"]}:{qreg["sp0"]+3}], v22, s[32:35], 0 offen'), gs0)
    s1 = L.add('G', lambda: I(f'buffer_load_dwordx2 v[{qreg["sp1"]}:{qreg["sp1"]+1}], v22, s[32:35], 0 offen offset:16'), gs0 + 6)
    s2 = L.add('G', lambda: I(f'buffer_load_dword v{qreg["sp1"]+2}, v23, s[32:35], 0 offen'), gs0 + 12)
    live(qiv, 'sp0', s0); live(qiv, 'sp1', s1, s2)
    spk = lambda d: qreg['sp0'] + d if d < 4 else qreg['sp1'] + d - 4
    sc = {}
    for t in (3, 0, 1, 2):
        for r in range(4 if t < 3 else 2):
            j = 3*r + t if t < 3 else 12 + r
            f = (lambda t=t, r=r, j=j: I(f'v_lshlrev_b32 v{qreg[("sc",t)]+r}, 16, v{spk(j//2)}')) if j % 2 == 0 else \
                (lambda t=t, r=r, j=j: I(f'v_and_b32 v{qreg[("sc",t)]+r}, 0xffff0000, v{spk(j//2)}'))
            sc[t, r] = L.add('V', f, alast[(t, 0)] - 40, hard=alast[(t, 0)] + DL - 1, preds=[(s0, 50), (s1, 50), (s2, 50)], slack=40)
            live(qiv, ('sc', t), sc[t, r], 10**6); live(qiv, 'sp0', sc[t, r]); live(qiv, 'sp1', sc[t, r])
    x = L.add('G', lambda: I('buffer_atomic_add v45, v1, s[24:27], s77 offen sc0 sc1'), g_at, preds=[s0, s1, s2, bar[6]] + list(cbr.values()), slack=asl)
    for t in (f'v_bitop3_b32 v45, v45, {1 if "a" in dg else 15}, v0 bitop3:0xbe', 'v_lshlrev_b32 v45, 22, v45'):
        x = L.add('V', lambda t=t: I(t), NG - g_ep, preds=[(x, 0)])
    L.add('G', lambda: I('buffer_store_dword v47, v45, s[12:15], s78 offen sc1'), 0, preds=[x])
    def mulq(t, i, pr=()):
        c = ACC(t, i)
        return [L.add('V', lambda r=r: I(f'v_mul_f32 v{c+r}, v{c+r}, v{qreg[("sc",t)]+r}'), alast[(t, i)] + DL, preds=[(sc[t, r], 0)] + ([(pr[r], 0)] if pr else []), slack=8 if t < 2 else 2)
                for r in range(4 if t < 3 else 2)]
    lastst = [None, None]
    lutbar = 1 if grp[1] == 1 else 0
    def e2(i, bar, n, gate=None):
        rds = [L.add('Q', lambda k=('e2', i, j), j=j: I(f'ds_read_b128 v[{qreg[k]}:{qreg[k]+3}], v24 offset:{so_(i) + 2*j*RS}'), 0, preds=[(bar, 2*tsp*n)], slack=j) for j in range(2)]
        for j in range(2):
            k = ('e2', i, j); so = 66 + j
            sm = L.add('S', lambda j=j, so=so: I(f's_mov_b32 s{so}, {(16*i + 2*j)*N*2}'), P2 + j, preds=[lastst[j]], slack=2)
            x = L.add('G', lambda k=k, so=so: I(f'buffer_store_dwordx4 v[{qreg[k]}:{qreg[k]+3}], v25, s[16:19], s{so} offen {aux_out}'), 0,
                      preds=[(rds[j], rl), sm, gate, (lastst[1 - j], tsp) if lastst[1 - j] else None], slack=1)
            live(qiv, k, rds[j], x); lastst[j] = x
        return rds
    assert sum(grp) == 8 and grp[0] == 1
    if addtid: m0ex = L.add('S', lambda: I('s_mov_b32 m0, s60'), P2 - 20, preds=hist[-1:]); assert rot is None
    stg = []; bq = []; i0 = 0; prevg = []; syn = []
    for n in grp:
        tiles = list(range(i0, i0 + n)); i0 += n
        if addtid:
            ex = [L.add('D', lambda c=ACC(3, i), i=i, r=r: I(f'ds_write_addtid_b32 v{c+2+r} offset:{xo_(i) + 256*r}', defs={f'ex{i}'}), alast[(3, i)] + DL, preds=[bar[5] if i < 3 else tbl_free, (m0ex, 2)], slack=3)
                  for i in tiles for r in range(2)]
        else:
            ex = [L.add('W', lambda c=ACC(3, i), i=i: I(f'ds_write_b64 v29, v[{c+2}:{c+3}] offset:{xo_(i)}', defs={f'ex{i}'}), alast[(3, i)] + DL, preds=[bar[5] if i < 3 else tbl_free], slack=3) for i in tiles]
        lut = tiles[0] == lutbar
        if fsync:
            n_ = len(bq); tk = ('sy', n_)
            arr = L.add('W', lambda: I('ds_add_u32 v35, v45 offset:128'), 0, preds=ex + [p for p, _ in stg] + (dall if lut else []) + bq[-1:], slack=0)
            b_ = L.add('D', lambda tk=tk: I(f'ds_read_b32 v{treg[tk]}, v35 offset:128'), 0, preds=[(arr, fsync)], slack=0)
            cm = L.add('V', lambda tk=tk, n_=n_: I(f'v_cmp_gt_u32 vcc, {8*(n_ + 1)}, v{treg[tk]}'), 0, preds=[(b_, rl - 2)], slack=0)
            gate = cm.rel = L.add('E', lambda n_=n_: [I(f's_cbranch_vccnz L_sy{n_}'), I(f'L_syb{n_}:')], 0, preds=[(cm, 2)], slack=0)
            live(tiv, tk, b_, gate); bq.append(gate); spec = [b_]; syn.append((spec, cm))
            if lut: tbl_free = gate
            for m_, i in enumerate(prevg): spec += e2(i, b_, m_, gate)
        else:
            gate = None
            b_ = L.add('B', lambda tiles=tiles, prevg=prevg, lut=lut: I('s_barrier', uses={f'ex{i}' for i in tiles} | {f'stg{i}' for i in prevg} | ({'lut'} if lut else set())), 0,
                       preds=[(x, bw) for x in ex] + stg + ([(d, bw) for d in dall] if lut else []), slack=0)
            bq.append(b_)
            if lut: tbl_free = b_
            for m_, i in enumerate(prevg): e2(i, b_, m_)
        stg = []
        for i in tiles:
            c = ACC(3, i); k = ('ex', i)
            gx = L.add('D', lambda i=i, k=k: I(f'ds_read2st64_b32 v[{qreg[k]}:{qreg[k]+1}], v30 offset0:{xo_(i)//256} offset1:{xo_(i)//256+1}' if addtid else f'ds_read_b64 v[{qreg[k]}:{qreg[k]+1}], v30 offset:{xo_(i)}'), 0, preds=[(b_, 0)], slack=3)
            ad = [L.add('V', lambda r=r, c=c, k=k: I(f'v_add_f32 v{c+r}, v{c+r}, v{qreg[k]+r}'), 0, preds=[(gx, rl), gate], slack=6) for r in range(2)]
            if fsync: spec.append(gx)
            mu = mulq(3, i, ad)
            cv = L.add('V', lambda c=c, k=k: I(f'v_cvt_pk_bf16_f32 v{qreg[k]}, v{c}, v{c+1}'), 0, preds=[(y, 0) for y in mu], slack=6)
            x = L.add('W', lambda i=i, k=k: I(f'ds_write_b32 v28, v{qreg[k]} offset:{so_(i)}', defs={f'stg{i}'}), 0, preds=[cv], slack=6)
            live(qiv, k, gx, x)
            stg.append((x, bw))
            mu = {t: mulq(t, i) for t in range(3)}
            cvs = []
            for u in range(3):
                k = ('cv', i, u // 2)
                cvs.append([L.add('V', lambda k=k, u=u, v=v, i=i: I(f'v_cvt_pk_bf16_f32 v{qreg[k]+2*(u%2)+v}, v{ACC((4*u+2*v)%3, i) + (4*u+2*v)//3}, v{ACC((4*u+2*v+1)%3, i) + (4*u+2*v+1)//3}'),
                            0, preds=[(mu[j % 3][j // 3], 0) for j in (4*u + 2*v, 4*u + 2*v + 1)], slack=3 + u) for v in range(2)])
            for u in range(3):
                k = ('cv', i, u // 2)
                x = L.add('W', lambda k=k, u=u, i=i: I(f'ds_write_b64 v26, v[{qreg[k]+2*(u%2)}:{qreg[k]+2*(u%2)+1}] offset:{so_(i) + 8*u}', defs={f'stg{i}'}), 0,
                          preds=(cvs[u] if i != 7 else cvs[0] + cvs[1] + cvs[2]) + [tbl_free if i else bar[5]] + ([(x, wsp)] if u and wsp else []), slack=2)
                live(qiv, k, x, *cvs[u]); stg.append((x, bw))
        if fsync: gate.preds += [(y, 0) for y in spec]
        prevg = tiles
    bfin = L.add('B', lambda: I('s_barrier', uses={f'stg{i}' for i in prevg}), 0, preds=stg, slack=0)
    for i in prevg: e2(i, bfin, 0)
    L.gsp2 = (P2, min(tsp, gsp)); L.shift = shift; L.mix = mix
    L.run(-60)
    if verbose: print('  barriers', sorted(set(v.gap for v in vis.values())), 'tiles', [b.gap for b in bq], 'round store', rdone.gap, 'overflow', L.novf, 'lost', int(L.lost))
    if verbose and fifo: print('  G:', ' '.join(f'{x.name or "r"}@{x.gap}>{int(x.fin)}' for x in sorted((x for x in L.its if hasattr(x, 'fin')), key=lambda x: x.gap)).replace('(', '').replace(')', '').replace(', ', ''))
    def iv(d, ext=0):
        o = {}
        for k, v in d.items():
            gs = [x.gap if isinstance(x, It) else x for x in v]
            o[k] = (min(gs), max(gs) + ext)
        return o
    xreg.update(linscan(iv(xiv), [8*k for k in range(32)], 'octets', verbose))
    areg.update({w: xreg[wo(w)[0]] + wo(w)[1] for w in wfirst})
    qreg.update(linscan(iv(qiv, 1), [64 + 4*k for k in range(16)] + [48, 52], 'quads', verbose))
    treg.update(linscan(iv(tiv), list(range(56, 64)) + ([5, 6, 7, 27, 29, 31, 46] if follow is not None and addtid else [5, 6, 7, 27, 31, 46] if follow is not None else []), 'temps', verbose))
    cnt = {}
    def skip(x, g=0):
        if g >= 112:
            cnt[x.op] = cnt.get(x.op, 0) + 1
            if 'Q' in dg and x.op == 'ds_read_b128' and x.text.split()[1][0] == 'a' and cnt[x.op] % 2: return True
            if 'D' in dg and x.op == 'ds_read_b32' and cnt[x.op] % 2: return True
            if 'V' in dg and x.op == 'v_perm_b32' and cnt[x.op] % 2: return True
            if 'L' in dg and x.text.endswith('lds') and cnt[x.op] % 2: return True
        if g >= P2:
            if '1' in dg and x.op == 's_barrier': return True
            if '2' in dg and x.op.startswith('ds_write'): return True
            if '3' in dg and x.op == 'buffer_store_dwordx4': return True
            if '4' in dg and x.op in ('v_mul_f32', 'v_add_f32', 'v_cvt_pk_bf16_f32'): return True
            if '5' in dg and x.op.startswith('ds_read') and x.text.split()[1][0] == 'v': return True
        if 'e' in dg and x.op == 'buffer_store_dword': return True
        if 'a' in dg and x.op == 'buffer_atomic_add': return True
        if 's' in dg and 'store' in x.op and ('s62' in x.text or 's60' in x.text): return True
        if 'c' in dg and x.op in ('v_bitop3_b32', 'v_cmp_lt_u32', 's_cbranch_vccnz'): return True
        if 'l' in dg and 's[4:7]' in x.text: return True
        if 'x' in dg and x.text.endswith('lds'): return True
        if 'y' in dg and 'load' in x.op and 's[12:15]' in x.text: return True
        if 'b' in dg and x.op == 's_barrier': return True
        return False
    def emit(s, g):
        for it in L.items(g):
            r = it.fn()
            for x in (r if isinstance(r, list) else [r]):
                if skip(x, g): continue
                if 'p' in dg and 'load' in x.op: x = I(x.text.replace(' sc1', ''), defs=x.defs, uses=x.uses)
                s(x)

    s = Stream()
    def stamp(k):
        if stamps: s(f's_waitcnt lgkmcnt(0)\ns_memtime s[100:101]\ns_waitcnt lgkmcnt(0)\ns_sub_u32 s{(96, 97, 53, 54)[k]}, s100, s82')
    s('s_cmp_ge_u32 s2, 256\ns_cbranch_scc1 L_end')
    if skew:
        s('s_memrealtime s[80:81]\ns_waitcnt lgkmcnt(0)\ns_lshr_b32 s82, s80, 12\ns_lshl_b32 s82, s82, 3\ns_and_b32 s83, s2, 7\ns_add_u32 s82, s82, s83')
        s(f's_mul_i32 s82, s82, 0x9e3779b1\ns_lshr_b32 s83, s82, 15\ns_xor_b32 s82, s82, s83\ns_mul_i32 s82, s82, 0x85ebca6b\ns_mul_hi_u32 s82, s82, {skew}\ns_add_u32 s82, s82, s80')
        s('L_skew:\ns_memrealtime s[80:81]\ns_waitcnt lgkmcnt(0)\ns_cmp_lt_u32 s80, s82\ns_cbranch_scc1 L_skew')
    if stamps: s('s_memrealtime s[80:81]\ns_memtime s[82:83]')
    s('s_load_dwordx2 s[4:5], s[0:1], 8\ns_load_dwordx2 s[12:13], s[0:1], 48\ns_load_dwordx2 s[8:9], s[0:1], 0\ns_load_dwordx2 s[28:29], s[0:1], 16')
    s(f's_getpc_b64 s[48:49]\nL_pc:\ns_mov_b32 s50, CODE_BYTES\ns_mov_b32 s51, 0x20000')
    s('s_lshr_b32 s61, s2, 3\nv_lshl_add_u32 v46, v0, 5, s61\nv_lshlrev_b32 v46, 7, v46')
    s('buffer_load_dword v1, v46, s[48:51], 0 offen offset:256')
    lm = {2: 1, 4: 2, 8: 3, 16: 4}[xm]
    gm = 16 // xm; lgm = 4 - lm
    s('v_lshrrev_b32 v5, 6, v0\nv_and_b32 v2, 63, v0')
    s('s_and_b32 s60, s2, 7')
    s('v_readfirstlane_b32 s63, v5')
    s(f's_and_b32 s58, s60, {gm-1}\ns_lshl_b32 s58, s58, {lm}\ns_and_b32 s62, s61, {xm-1}\ns_add_u32 s58, s58, s62')
    s(f's_lshr_b32 s59, s60, {lgm}\ns_lshl_b32 s59, s59, {5-lm}\ns_lshr_b32 s62, s61, {lm}\ns_add_u32 s59, s59, s62')
    s('v_mul_u32_u24 v18, 12, v2')
    s('s_lshl_b32 s60, s63, 4\ns_add_u32 s60, s60, s58')
    s(f's_mul_i32 s61, s60, {8*QROW}\ns_mul_i32 s79, s59, 896\ns_add_u32 s61, s61, s79')
    s(f's_mov_b32 s6, {K*QROW}\ns_mov_b32 s7, 0x20000')
    s(f's_lshl_b32 s78, s59, 7\ns_add_u32 s78, s78, {EOFF + 12}')
    s('v_and_b32 v4, 15, v2\nv_lshrrev_b32 v3, 4, v2')
    s('v_and_b32 v12, 1, v3\nv_lshlrev_b32 v13, 1, v12\nv_xor_b32 v13, v13, v4\nv_lshrrev_b32 v19, 1, v3\nv_lshl_add_u32 v19, v19, 4, v13')
    s(f's_bfe_u32 s70, s58, 0x10002\ns_xor_b32 s70, s70, 1\nv_xor_b32 v12, s70, v12\nv_mul_u32_u24 v12, {QROW}, v12\nv_add_lshl_u32 v19, v19, v12, 2\nv_add_u32 v19, 768, v19')
    progs = list(dict.fromkeys(roles)); rid = [progs.index(r) for r in roles]
    s(f's_mov_b32 s46, {rid[3]}')
    for w_ in range(3):
        if rid[w_] != rid[3]: s(f's_cmp_lg_u32 s63, {w_}\ns_cbranch_scc1 L_role{w_}\ns_mov_b32 s46, {rid[w_]}\nL_role{w_}:')
    nst = 0 if test_help or 's' in dg else 1
    neg = Stream()
    for g in range(-60, 0): emit(neg, g)
    neg = neg.l
    def set_d(s):
        s('v_lshlrev_b32 v16, 1, v4\nv_lshrrev_b32 v17, 4, v0\nv_lshlrev_b32 v17, 1, v17')
        s(f's_mov_b32 s30, 32\ns_mov_b32 s31, 0x20000')
        s('v_lshrrev_b32 v6, 3, v2\nv_and_b32 v7, 7, v2\nv_xor_b32 v13, v7, v3')
        s('s_lshl_b32 s70, s63, 5\nv_add_lshl_u32 v12, v6, s70, 11')
        s('v_lshl_add_u32 v36, v13, 4, v12\nv_xor_b32 v37, 64, v36')
        s(f'v_add_u32 v37, {8*2048-1024}, v37')
        if rot is None: s(f'v_add_u32 v38, {2*(8*2048-1024)}, v36\nv_add_u32 v39, {2*(8*2048-1024)}, v37')
        s(f's_mov_b32 s10, {M*K*2}\ns_mov_b32 s11, 0x20000')
        s('s_lshl_b32 s55, s58, 18\ns_and_b32 s71, s58, 8\ns_lshl_b32 s70, s71, 4\ns_add_u32 s55, s55, s70\ns_lshl_b32 s57, s63, 12')
        if rot is None: s(f's_xor_b32 s69, s55, 128\ns_add_u32 s57, s57, {RING}')
        else: s(f's_and_b32 s70, s59, {rot & 1}\ns_lshl_b32 s71, s70, 15\ns_xor_b32 s55, s55, s71\ns_lshl_b32 s71, s70, 11\ns_xor_b32 s57, s57, s71')
    def set_n(s):
        s(f's_mov_b32 s14, {WSUSE}\ns_mov_b32 s15, 0x20000')
        s('s_lshl_b32 s68, s59, 17\ns_lshl_b32 s62, s60, 10\ns_add_u32 s62, s62, s68\nv_lshlrev_b32 v20, 4, v2')
    def set_s(s):
        s('s_and_b32 s64, s63, 1\ns_lshr_b32 s65, s63, 1')
        s('s_and_b32 s70, s58, 8\ns_lshl_b32 s70, s70, 10\ns_lshl_b32 s71, s64, 12\ns_add_u32 s70, s70, s71\ns_lshl_b32 s71, s63, 8\ns_add_u32 s70, s70, s71\ns_add_u32 s70, s70, s68')
        s('v_lshl_add_u32 v32, v4, 4, s70\nv_lshl_add_u32 v32, v3, 10, v32\nv_xor_b32 v33, 4096, v32\nv_xor_b32 v34, 8192, v32\nv_xor_b32 v44, 12288, v32')
        for b in range(4): s(f's_mov_b32 s{36+b}, {0x0c0c0000 | ((4+b) << 8)}')
        s('v_and_b32 v35, 31, v2\nv_lshlrev_b32 v35, 2, v35')
        s(f's_lshl_b32 s70, s64, 6\ns_add_u32 s70, s70, {RING}')
        s('v_lshrrev_b32 v12, 1, v4\nv_xor_b32 v12, v12, v3\nv_lshlrev_b32 v12, 4, v12\nv_lshl_add_u32 v12, v4, 7, v12')
        s('v_xor_b32 v40, s70, v12\nv_xor_b32 v41, 64, v40\nv_add_u32 v42, 65536, v40\nv_add_u32 v43, 65536, v41')
        s('s_mov_b32 s52, 0')
        if cpf2: s('v_add_u32 v45, 16384, v46')
        if rot is not None: s(f's_and_b32 s70, s59, {rot & 2}\ns_lshl_b32 s71, s70, 6\ns_xor_b32 s69, s55, s71\ns_lshl_b32 s71, s70, 13\ns_xor_b32 s60, s57, s71')
    sets = {'d': set_d, 'n': set_n, 's': set_s}
    for ch in pre: sets[ch](s)
    s('s_waitcnt lgkmcnt(0)')
    s('s_load_dword s76, s[12:13], s78')
    def pt(s, ch):
        if pticks and ch in pticks: s(f's_memtime s[{84+2*pticks.index(ch)}:{85+2*pticks.index(ch)}]')
    pt(s, '0')
    def emit_dma(s, it, a=0, b=8):
        for m0, so, d in dma(it)[a:b]:
            if m0: s(m0)
            if so: s(so)
            s(d)
    def block(ch):
        s = Stream()
        if ch == 'X':
            for e, sh in rows:
                s((sh_load if sh else own_load)(128 + 4*e))
                if sh or e > 3: s(f's_add_u32 s61, s61, {QROW if e < 7 else (512 - 7)*QROW}')
        if ch == 'L':
            if 'd' not in pre: set_d(s)
            s('buffer_load_ushort v16, v16, s[28:31], 0 offen\nbuffer_load_ushort v17, v17, s[28:31], 0 offen')
        if ch == 'D': emit_dma(s, 0, 0, 4)
        if ch == 'd': emit_dma(s, 0, 4, 8)
        if ch == 'S':
            s('s_load_dwordx2 s[32:33], s[0:1], 24\ns_load_dwordx2 s[16:17], s[0:1], 32\ns_load_dwordx2 s[24:25], s[0:1], 40')
            for c_ in 'ns':
                if c_ not in pre: sets[c_](s)
            for y in late_l: s(I(y.text.replace('v16', 'v12').replace('v17', 'v13')))
            s('v_lshlrev_b32 v8, 4, v7\nv_lshl_add_u32 v8, v0, 8, v8')
            for j in range(1, 8): s(f'v_xor_b32 v{8 + j}, {16*j}, v8')
        if ch == 'G': s(f's_waitcnt lgkmcnt(0)\ns_add_u32 s76, s76, {TAGC}')
        if ch == 'K':
            for x in pack([128 + 4*e for e in range(8)]): s(x)
            if nst: s(own_store(128))
            s(f's_add_u32 s62, s62, {64*PROW}')
        if ch == 'T':
            if fsync: s('v_mov_b32 v45, 0'); s('ds_write_b32 v35, v45 offset:128', defs={'tbl'}); s('v_mov_b32 v45, 1')
            for r in range(56, 60): s(f'v_lshl_or_b32 v{r}, v17, 16, v16')
            for j in range(8): s(f'ds_write_b128 v{8 + j}, v[56:59]', defs={'tbl'})
        if ch == 'W' and pads: s('L_WARM:')
        if ch == 'B': s('s_barrier', uses={'tbl', 'dma00'} | (set() if 0 in split else {'dma01'}))
        if ch in 'Pp':
            for st in range(2): s(cload((0, int(ch == 'p')), st))
        if ch == 'Q':
            for x in neg:
                if x.op == 'ds_read_b128': s(x)
        if ch == 'F':
            s('s_lshl_b32 s70, s59, 3\ns_lshl_b32 s71, s58, 7\ns_add_u32 s70, s70, s71\ns_lshl_b32 s70, s70, 11')
            s(f'v_lshlrev_b32 v27, 7, v7\nv_lshl_add_u32 v27, v6, 11, v27\nv_add_u32 v21, {8 - xf}, v7\nv_lshrrev_b32 v21, 3, v21\nv_lshl_add_u32 v27, v21, 30, v27')
            s('buffer_load_dword v27, v27, s[8:11], s70 offen')
        if ch == 'E': emit_dma(s, 1, 0, dma1)
        pt(s, ch)
        return s.l
    blocks = {ch: block(ch) for ch in layout}
    head = s.l
    s = Stream()
    s('L_chk0:')
    for x in chk((0, 0), 12): s(x)
    s('s_cbranch_vccnz L_retry0')
    pt(s, 'C')
    if plate == 1:
        for st in range(2): s(cload((0, 1), st))
    pv = [x for x in neg if x.kind == 'V']
    dd = [x for x in neg if x.op == 'ds_read_b32']
    assert len(pv) + len(dd) + 16 == len(neg)
    assert len(set(tuple(x.w) for x in pv[:8])) == 8 and len(set(tuple(x.w) for x in pv[8:])) == len(pv) - 8
    for x in pv[:8] + dd[:8] + pv[8:] + dd[8:]: s(x)
    if plate == 2:
        for st in range(2): s(cload((0, 1), st))
    if chk0all:
        for x in chk((0, 1), 12): s(x)
    stamp(0)
    s('s_cbranch_vccz L_main')
    s('L_retry0:')
    n0 = len(s.l)
    if stamps: s('s_or_b32 s52, s52, 0x10000')
    s(f's_add_u32 s52, s52, 1\ns_and_b32 s23, s52, {SPIN - 1}\ns_cbranch_scc1 L_retry0b\ns_mov_b32 s22, {kap[0]}\ns_call_b64 s[20:21], L_help\nL_retry0b:')
    for k in range(4 if 'p' in layout else 2): s(cload((0, k // 2), k % 2))
    s('s_waitcnt vmcnt(0) lgkmcnt(0)\ns_branch L_chk0')
    def stubs(o):
        o(f'L_tick:\ns_add_u32 s52, s52, 1\ns_and_b32 s23, s52, {SPIN - 1}\ns_cbranch_scc0 L_help\ns_setpc_b64 s[20:21]')
        for c in sorted(corder, key=lambda c: (c[0] % 4, c)):
            if c not in cbr: continue
            nm = f'{c[0]}_{c[1]}'
            o(f'L_slow{nm}:')
            if stamps: o(f's_or_b32 s52, s52, {1 << (16 + c[0])}')
            o(f's_mov_b32 s22, {c[0]}\ns_call_b64 s[20:21], L_tick')
            o(cload(c, 0)); o(cload(c, 1))
            o('s_waitcnt vmcnt(0)')
            for x in chk(c, 12): o(x)
            o(f's_cbranch_vccnz L_slow{nm}\ns_branch L_back{nm}')
    if near: stubs(s)
    for x in s.l[n0:]: x.role = (2,)
    if pads: s('.p2align 12')
    s('L_main:')
    for g in range(NG):
        t, i, w, x, o_ = mf[g]
        c = ACC(t, i)
        src = '0' if g == afirst[(t, i)] else f'v[{c}:{c+3}]'
        A, B = areg[w], xreg[x] + o_
        s(f'v_mfma_f32_16x16x32_bf16 v[{c}:{c+3}], a[{A}:{A+3}], a[{B}:{B+3}], {src}')
        if g in ticks: s(f's_mem{"real" if rt else ""}time s[{84+2*ticks.index(g)}:{85+2*ticks.index(g)}]')
        if g == P2 - 1 and stamps: s('s_memrealtime s[14:15]'.replace('14:15', '98:99'))
        if g == P2 - 1 and not ticks: stamp(1)
        if g == NG - 1 and not ticks: stamp(2)
        emit(s, g)
        if pause and g in pause:
            for _ in range(pause[g] // 64): s('s_nop 15')
        if dnop and dnop[0] <= g < dnop[1] and g % dnop[2] == 0: s('s_nop 7')
    for g in range(NG, max(L.g) + 1): emit(s, g)
    stamp(3)
    tail = s.l
    hot = [x for x in tail if not hasattr(x, 'role')]
    need = {}
    for r, prog in enumerate(progs):
        lin = list(head)
        for ch in prog: lin += [I(f's_waitcnt vmcnt({clk})')] if ch == 'c' else blocks[ch]
        lin += hot
        own = set(map(id, lin)); out = insert_waits(lin, age_l=age_l, hmin=hmin); verify_waits(out)
        for a, b in zip(out, out[1:]):
            if id(a) not in own:
                m1 = re.search(r'vmcnt\((\d+)\)', a.text); m2 = re.search(r'lgkmcnt\((\d+)\)', a.text)
                need.setdefault(id(b), {})[r] = (int(m1.group(1)) if m1 else 99, int(m2.group(1)) if m2 else 99)
    nlab = [0]
    def with_waits(l, users, inloop=False, prim=None):
        o = []
        for x in l:
            if x.text == 'L_main:': inloop = True
            d = need.get(id(x))
            if d:
                lg = min(v[1] for v in d.values()); vm = {r: d.get(r, (99, 99))[0] for r in users}
                if inloop: vm = {r: min(vm.values()) for r in users}
                if prim is not None: vm = {r: vm[prim] for r in users}
                lv = sorted(set(vm.values()), reverse=True)
                t = ' '.join(([f'vmcnt({lv[0]})'] if lv[0] < 99 else []) + ([f'lgkmcnt({lg})'] if lg < 99 else []))
                if t: o.append(I('s_waitcnt ' + t))
                if len(lv) > 1:
                    nlab[0] += 1
                    for hi, lo in zip(lv, lv[1:]):
                        for r in users:
                            if vm[r] == hi: o += [I(f's_cmp_eq_u32 s46, {r}'), I(f's_cbranch_scc1 L_rw{nlab[0]}')]
                        y = I(f's_waitcnt vmcnt({lo})'); y.only = [r for r in users if vm[r] <= lo]; o.append(y)
                    o.append(I(f'L_rw{nlab[0]}:'))
            o.append(x)
        return o
    allr = list(range(len(progs)))
    def edge(frm, nxt_layout):
        o = []; tg = {}
        for r, prog in enumerate(progs):
            if frm is not None and frm not in prog: continue
            k = 0 if frm is None else prog.index(frm) + 1
            w_ = None
            if k < len(prog) and prog[k] == 'c': w_ = clk; k += 1
            to = prog[k] if k < len(prog) else '$'
            if to == 'K' and r != kprim:
                w_ = min(v[r][0] for n, x in enumerate(blocks['K']) for v in [need.get(id(x), {})] if r in v) if any(r in need.get(id(x), {}) for x in blocks['K']) else w_
            tg[r] = (to, w_)
        rs = sorted(tg, key=lambda r: tg[r][0] == nxt_layout)
        for n, r in enumerate(rs):
            to, w_ = tg[r]; last = n == len(rs) - 1 or all(tg[q] == tg[r] for q in rs[n:])
            lbl = 'L_chk0' if to == '$' else f'L_{to}'
            if last:
                if w_ is not None: y = I(f's_waitcnt vmcnt({w_})'); y.only = rs[n:]; o.append(y)
                if to != nxt_layout: o.append(I(f's_branch {lbl}'))
                break
            if w_ is None: o += [I(f's_cmp_eq_u32 s46, {r}'), I(f's_cbranch_scc1 {lbl}')]
            else:
                nlab[0] += 1; y = I(f's_waitcnt vmcnt({w_})'); y.only = [r]
                o += [I(f's_cmp_lg_u32 s46, {r}'), I(f's_cbranch_scc1 L_ed{nlab[0]}'), y, I(f's_branch {lbl}'), I(f'L_ed{nlab[0]}:')]
        return o
    fin = {None: with_waits(head, allr) + edge(None, layout[0])}
    for n, ch in enumerate(layout):
        users = [r for r in allr if ch in progs[r]]
        fin[ch] = [I(f'L_{ch}:')] + with_waits(blocks[ch], users, prim=kprim if ch == 'K' else None) + edge(ch, layout[n + 1] if n + 1 < len(layout) else '$')
    ftail = with_waits(tail, allr)
    for r, prog in enumerate(progs):
        lin = fin[None] + [x for ch in prog if ch != 'c' for x in fin[ch]] + [x for x in ftail if not hasattr(x, 'role')]
        lin = [x for x in lin if r in getattr(x, 'only', [r])]
        verify_waits(lin)
    st = fin[None] + [x for ch in layout for x in fin[ch]] + ftail
    st, probs = check_hazards(st, fix=True)
    if verbose:
        for p in probs: print('  nop:', p)
    lab = {x.text[:-1]: k for k, x in enumerate(st) if x.kind == 'L' and x.text.endswith(':')}
    m0 = lab['L_main'] + 1
    sz = sizes(st[m0:])
    tot = sum(sz)
    if pads:
        pos = [m0]; addr = 4; nxt = 4096; best = None; fill = 0
        for k, x in enumerate(st[m0:]):
            if addr >= nxt and (x.kind == 'M' or fill > 6) and x.kind != 'L':
                if addr <= nxt + 56:
                    if best is None or fill < best[0]: best = (fill, m0 + k)
            if addr > nxt + 56:
                assert best, 'no pad position'
                pos.append(best[1]); addr += 4; nxt += 4096; best = None
            fill = 0 if x.kind == 'M' else fill + (x.kind != 'L')
            addr += sz[k]
        if addr + 4 > nxt: pos.append(best[1] if best else len(st))
        npad = len(pos)
        assert npad <= 6
        first = warm
        for n, p in reversed(list(enumerate(pos))):
            st[p:p] = [I(f'L_pad{n}:'), I(f's_cbranch_execz {"L_warmed" if n + 1 in first.values() or n == npad - 1 else f"L_pad{n+1}"}')]
        w = [I('s_mov_b64 exec, 0')]
        for wv_, k in first.items():
            if k < npad: w += [I(f's_cmp_eq_u32 s63, {wv_}'), I(f's_cbranch_scc1 L_pad{k}')]
        w += [I('L_warmed:'), I('s_mov_b64 exec, -1')]
        st[lab['L_WARM']:lab['L_WARM'] + 1] = w
    nfill = {}; cur = None
    for x in st:
        if x.kind == 'M':
            if cur is not None: nfill[cur] = nfill.get(cur, 0) + 1
            cur = 0
        elif cur is not None and x.kind != 'L': cur += 1
    if verbose: print('  fillers/gap histogram', sorted(nfill.items()), 'loop bytes', tot)
    body = render(st).replace('CODE_BYTES', 'L_code_end-L_pc')
    if stamps:
        a = Asm()
        a('s_memrealtime s[78:79]\ns_waitcnt vmcnt(0) lgkmcnt(0)\ns_sub_u32 s78, s78, s80')
        a('s_sub_u32 s98, s98, s80')
        ex = [(96, 79), (54, 79)]
        if pticks:
            for k in range(6): a(f's_sub_u32 s{40+k}, s{84+2*k}, s82')
            ex += [(40+k, 79) for k in range(6)]
        for k in range(len(ticks)): a(f's_sub_u32 s{40+k}, s{84+2*k}, s{80 if rt else 82}')
        ex += [(40+k, 79) for k in range(len(ticks))]
        if not ticks: ex += [(97, 79), (53, 79)]
        ex += [(98, 79), (78, 79), (52, 79)]
        a('s_mov_b32 s79, 0')
        if swave: a(f'v_xor_b32 v0, {64*swave}, v0')
        stamp_end(a, 80, 64, 2, 8, nst=4+len(ex), extra=ex)
        body += a.text()
        if verbose: print('  nstamp', 4 + len(ex))
    body += 'L_end:\n    s_endpgm\n'
    o = Stream()
    if not near: stubs(o)
    for n_, (spec, cm) in enumerate(syn):
        o(f'L_sy{n_}:')
        for y in spec: o(y.fn().text)
        o('s_waitcnt lgkmcnt(0)'); o(cm.fn().text)
        o(f's_cbranch_vccnz L_sy{n_}\ns_branch L_syb{n_}')
    o('L_help:\ns_mov_b32 s53, s61\ns_mov_b32 s54, s62')
    o(f's_mul_i32 s61, s22, {128*QROW}\ns_add_u32 s61, s61, s79')
    o('s_lshl_b32 s62, s22, 14\ns_add_u32 s62, s62, s68')
    o('s_mov_b32 s22, 0')
    o('L_help_row:')
    o('v_mov_b32 v21, v19\ns_xor_b32 s23, s22, s58\ns_bitcmp0_b32 s23, 2\ns_cbranch_scc1 L_help_same')
    o(f'v_add_u32 v12, {4*QROW}, v19\nv_subrev_u32 v13, {4*QROW}, v19\nv_min_u32 v21, v12, v13\nL_help_same:')
    o('v_mov_b32 v8, 0\nv_mov_b32 v9, 0\nv_mov_b32 v10, 0\nv_mov_b32 v11, 0\ns_mov_b32 s23, 0')
    o('L_help_e:')
    o('v_mov_b32 v15, 0')
    o(own_load(12))
    o('s_cmp_ge_u32 s23, 16\ns_cbranch_scc1 L_help_own')
    o(sh_load(12, 21))
    o('L_help_own:\ns_waitcnt vmcnt(0)')
    for c in range(4): o(f'v_lshl_or_b32 v{8+c}, v{12+c}, s23, v{8+c}')
    o(f's_add_u32 s61, s61, {QROW}')
    o('s_add_u32 s23, s23, 4\ns_cmp_lt_u32 s23, 32\ns_cbranch_scc1 L_help_e')
    o(tagged(11)); o('s_nop 1')
    o(own_store(8))
    o(f's_add_u32 s62, s62, {PROW}')
    o('s_waitcnt vmcnt(0)')
    o('s_add_u32 s22, s22, 1\ns_cmp_lt_u32 s22, 16\ns_cbranch_scc1 L_help_row')
    o('s_mov_b32 s61, s53\ns_mov_b32 s62, s54')
    o('s_setpc_b64 s[20:21]')
    body += render(o.finish(verbose=False)) + 'L_code_end:\n'
    return body

NOTES = """;
; Weights: the 16 workgroups of a column group pack the int32 codes cooperatively, 8 codes per word, into d_ws (write-through stores).
;   granules of earlier launches never match. Consumers check the tags of every load and re-load until they match; a wave that waits too
;   long packs the missing K block itself, so no residency or placement is assumed. The last workgroup of a group to count itself in
; x tile: LDS-DMA ring of three K128 stages (XOR-swizzled). The last K blocks run row tile by row tile with the weights held in registers,
;   so scaling, bf16 conversion, LDS staging and the output stores overlap the MFMAs.
; L_pad*: branch pads at the 4 KiB code pages, visited once with EXEC = 0 (branches only) to get those lines into the instruction cache.
"""
def build(**kw):
    return single(gemm_kernel(**kw), 256, 256, 163840, vgpr=512, accum=256, sgpr=102, notes=NOTES)
def kdict(**kw):
    return dict(name=KNAME, body=gemm_kernel(**kw), grid=256, block=256, lds=163840, vgpr=512, accum=256, sgpr=102)
if __name__ == '__main__':
    open('standalone__normalfloat_lut_af4__prompt.s', 'w').write(build())
```

```python
import sys, subprocess, re
sys.path.insert(0, 'tools')
from asmlib import *
from sched import *

M, K, N = 2048, 1024, 3584
QROW = N * 4
RS = 464
RING = 65536
NIT = 8
PROW = 1024
PNT = 128 * PROW
EOFF = 16 * PNT
WSUSE = EOFF + 16 * 128
TAGC = 0x9e3779b9
SPIN = 4096

def sizes(st):
    txt = '.amdgcn_target "amdgcn-amd-amdhsa--gfx950"\n.text\n'
    for x in st:
        if x.kind == 'L': continue
        t = x.text
        if x.op.startswith('s_cbranch') or x.op == 's_branch': t = x.op + ' 0'
        txt += t + '\n'
    open('_sz.s', 'w').write(txt)
    r = subprocess.run(['llvm-mc', '-triple=amdgcn-amd-amdhsa', '-mcpu=gfx950', '-show-encoding', '_sz.s'], capture_output=True, text=True)
    assert r.returncode == 0, r.stderr[:500]
    enc = [len(m.split(',')) for m in re.findall(r'encoding: \[(.*?)\]', r.stdout)]
    out = []; k = 0
    for x in st:
        if x.kind == 'L': out.append(0)
        else: out.append(enc[k]); k += 1
    assert k == len(enc)
    return out

def gemm_kernel(skew=0, stamps=False, pticks=None, ticks=(), rt=False, dg='', pause=None, swave=0, test_help=False, verbose=True,
                aux_out='sc1', xm=4, LA_P=110, LAT_P=60, g_p=(0, 1, 60, 110), LA_X=220, LAT_X=60, dma_sp=4, dma1=0,
                rB=(2, 4, 60), rvis=(85, 140), gK=159, gKh=160, pads=True, nf6=1, gbm=16, lsl=20, split=(0, 1, 2), ybar=32, chk0all=False,
                bar_at=60, bar0=76, gsp=4, wv=False, ban='', dhard=7, ovf=12, age_l=9, DL=4, bw=5, lateset=85, g_sc=470,
                pre='dn', layout='XLDSGKTWBQPdE', roles=('XLDSGKTWBQPdE', 'LSXDGTKBQPdE', 'LSDGTXBQPdKE', 'LSDGTXBQPdKE'), clk=4, warm={0: 0},
                fifo=(52, 32, 0.23, 0.15, 75, 4, 30), lk0=0, xdue=15, pdue=30, rdue=0, rbw=0, xds=0, grp=(1,1,1,1,1,1,1,1), tsp=4, rl=7, knee=None, ovf1=None, shift=True, snake=True, n5=7, plate=1, ychk=24, kprim=0, xf=0, b7=False, rot=None, cpf2=None, aux_q='nt', aux_x='', addtid=True, wsp=0, fsync=None, near=True, g_at=600, g_ep=120, asl=0, atb=True, mix=4, follow=0, hmin=5, k1=(110, 1), credit=1, g3=None, fs_set=range(8)):
    S = 2; dnop = None; aux_last = None
    kap = tuple(range(8))
    ACC = lambda t, i: 128 + (t * 8 + i) * 4
    slot = lambda it: (it + 1) % 3
    P1 = NIT - S
    mf = []
    def own(it, b, t, i, rev=False):
        for st in ((1, 0) if rev else (0, 1)): mf.append((t, i, (it, b, st, t), (it, b, i), 4*st))
    def shr(it, b, i): mf.append((3, i, (it, b, 0, 3), (it, b, i), 2))
    for it in range(P1):
        for b in range(2):
            nt_ = n5 if it == 5 else 8
            for t in range(3):
                for i in range(nt_): own(it, b, t, i, snake and i % 2)
            for i in range(nt_):
                if it in split: shr(it, b, i)
                elif b == 0:
                    for b2 in ((1, 0) if snake and i % 2 else (0, 1)): shr(it, b2, i)
    P2 = len(mf)
    def chain(t, i, its):
        for it in its:
            for b in range(2): shr(it, b, i) if t == 3 else own(it, b, t, i)
    for t in (3, 0, 1, 2):
        for i in range(nf6): chain(t, i, (6,))
    for i in range(8):
        for t in (3, 0, 1, 2): chain(t, i, (7,) if i < nf6 else (6, 7) if i < n5 else (5, 6, 7))
    NG = len(mf)
    assert NG == 896
    wfirst, wlast, xfirst, xlast, alast, afirst = {}, {}, {}, {}, {}, {}
    for g, (t, i, w, x, o) in enumerate(mf):
        wfirst.setdefault(w, g); wlast[w] = g; xlast[x] = g; alast[(t, i)] = g; afirst.setdefault((t, i), g)
        for st in range(2):
            if o == 2 or o == 4*st: xfirst.setdefault((x[0], x[1], st, x[2]), g)
    L = ListSched2(NG, gsp, ban, ovf, wv, fifo)
    areg = {}; qreg = {}; treg = {}
    xiv = {}; xreg = {}; aiv = {}; qiv = {}; tiv = {}
    def live(d, k, *its): d.setdefault(k, []).extend(its)
    PRE = -1000
    vis = {}; bar = {}
    for it in range(P1):
        bar[it] = vis[it + 1, 0] = vis[it + 1, 1] = L.add('B', lambda it=it: I('s_barrier', uses={f'q{it}', f'dma{it+1}0'} | (set() if it + 1 in split else {f'dma{it+1}1'})),
                                                         112*it + (bar0 if it == 0 else bar_at if it < 5 else bar_at * n5 // 8), slack=2, name=f'B{it}')
    if b7: bar[6] = vis[7, 0] = vis[7, 1] = L.add('B', lambda: I('s_barrier', uses={'dma70', 'dma71'}), P2 + 14*nf6 - 26, slack=2, name='B7')
    else:
        bar[6] = vis[7, 0] = vis[7, 1] = bar[5]; bar[5].target += 12
        bar[5].fn = lambda: I('s_barrier', uses={'q5', 'dma60', 'dma61', 'dma70', 'dma71'})
    for it in split: vis[it, 1] = L.add('B', lambda it=it: I('s_barrier', uses={f'dma{it}1'}), 112*it + ybar, slack=2, name=f'Y{it}')
    def qread(x):
        it, b, st, i = x
        sl = slot(it)
        base = 40 + (2 if sl == 2 else 0) + st
        off = (0 if sl == 2 else sl*32768) + b*16384 + i * 2048
        k = (it, b, i)
        return lambda: I(f'ds_read_b128 a[{xreg[k]+4*st}:{xreg[k]+4*st+3}], v{base} offset:{off}', defs={f'q{it}'})
    def addq(x, nom):
        it = L.add('Q', qread(x), nom, hard=xfirst[x] - dhard, preds=[(vis[x[:2]], 0)] if x[:2] in vis else [], slack=6, name=f'Q{x}')
        live(xiv, (x[0], x[1], x[3]), it, xlast[(x[0], x[1], x[3])])
        return it
    for it in range(P1):
        for b in range(2):
            for k in range(2*(n5 if it == 5 else 8)):
                q = addq((it, b, k % 2, k // 2), 112*it + ((ybar + 1 + 2*k if it in split else 1 + 3*k) if b else -47 + 3*k))
                if b: bar[it].preds.append((q, 8))
    xs = sorted([x for x in xfirst if xfirst[x] >= P2], key=lambda x: xfirst[x])
    for k, x in enumerate(xs): addq(x, min(P2 - 34 + int(3.5*k), xfirst[x] - 12))
    def dma(it):
        out = []
        for half in range(2):
            for j in range(4):
                if rot is None:
                    m0 = f's_add_u32 m0, s57, {slot(it)*32768 + half*16384}' if j == 0 else None
                    so = f's_add_u32 s{(56, 3)[half]}, s{(55, 69)[half]}, {256*it}' if j == 0 else None
                    out.append((m0, so, I(f'buffer_load_dwordx4 v{36+j}, s[8:11], s{(56, 3)[half]} offen offset:{j*1024} {aux_x} lds', defs={f'dma{it}{half}'})))
                else:
                    pr_, sp_ = j // 2, it in split
                    m0 = f's_xor_b32 m0, s{57 if sp_ else 60}, {(RING + slot(it)*32768) ^ half*16384 ^ pr_*2048}' if j % 2 == 0 else None
                    so = f's_xor_b32 s{(56, 3)[pr_]}, s{55 if sp_ else 69}, {256*it ^ half*128 ^ pr_*32768}' if j % 2 == 0 else None
                    out.append((m0, so, I(f'buffer_load_dwordx4 v{36+j%2}, s[8:11], s{(56, 3)[pr_]} offen offset:{j%2*1024} lds', defs={f'dma{it}{half}'})))
        return out
    hist = []
    npre = (8 + dma1) if 'd' in layout else 4
    for it in range(NIT):
        for k, (m0, so, d) in enumerate(dma(it)):
            if 8*it + k < npre: continue
            vb = vis[it, k // 4]
            t = max(vis[it, 0].target - LA_X, 3) + dma_sp*k if it > 1 else 1
            pr = [(hist[-1], 2)] if hist else []
            if it > 2: pr.append((bar[it - 3], 1))
            if m0: pr.append(L.add('S', lambda m0=m0: I(m0), max(t - 3, 0), preds=hist[-1:], slack=4))
            if so: pr.append(L.add('S', lambda so=so: I(so), max(t - 6, 0), preds=(hist[-5:-4] if len(hist) >= 5 else []) if rot is None else hist[-3:-2], slack=4))
            x = L.add('G', lambda d=d: d, t, preds=pr, slack=50 if it > 1 else 0, name=f'dma{it}.{k}')
            x.lines = 32; x.slow = 2*it >= xf; x.due = vb.target + (xdue if it < 6 or (b7 and it < 7) else -50 if it == 6 else 0) - (xds if it == 2 else 0)*(7 - k)
            vb.preds.append((x, LAT_X))
            hist.append(x)
    if cpf2:
        x = L.add('G', lambda: I('buffer_load_dword v1, v45, s[48:51], 0 offen offset:256'), cpf2, slack=0, name='C'); x.lines = 4; x.slow = False; x.due = cpf2
    def own_load(r): return f'buffer_load_dwordx3 v[{r}:{r+2}], v18, s[4:7], s61 offen {aux_q}'
    def sh_load(r, a=19): return f'buffer_load_dword v{r+3}, v{a}, s[4:7], s61 offen {aux_q}'
    tagged = lambda r: f'v_mov_b32_sdwa v{r}, s76 dst_sel:WORD_1 dst_unused:UNUSED_PRESERVE src0_sel:WORD_1'
    def pack(q):
        o = [f'v_lshl_or_b32 v{q[0]+c}, v{q[e]+c}, {4*e}, v{q[0]+c}' for e in range(1, 8) for c in range(4 if e < 4 else 3)]
        return o[:12] + [tagged(q[0] + 3)] + o[12:]
    def own_store(r): return f'buffer_store_dwordx4 v[{r}:{r+3}], v20, s[12:15], s62 offen sc1'
    rows = [(e, sh) for e in range(8) for sh in range(2 if e < 4 else 1)]
    g_r, sp, lat = rB
    ld = {}; prev = None
    for k, (e, sh) in enumerate(rows):
        pr = [prev]
        if e and not sh: pr.append(L.add('S', lambda: I(f's_add_u32 s61, s61, {QROW}'), 0, preds=[prev], slack=2))
        prev = x = ld[e, sh] = L.add('G', lambda e=e, sh=sh: I((sh_load if sh else own_load)(qreg[('B', e)])), g_r + sp*k, preds=pr, slack=25)
        x.lines = 8 if sh else 24; x.slow = True; x.due = gKh - rdue*(7 - e); x.bw = rbw / 3 if sh else rbw
    if gK:
        n1 = 0; b1 = None
        if k1:
            n1 = 4*k1[1]; assert 1 <= k1[1] <= 3
            b1 = L.add('B', lambda: [I(y) for y in pack([qreg[('B', e)] for e in range(8)])[:n1]] + (late_blk if lateset == 'block1' else []),
                       k1[0], hard=k1[0] + 1, preds=[(y, lat) for (e, sh), y in ld.items() if e <= k1[1]], slack=0)
            b1.must = 10**6; b1.credit = credit; b1.dur = n1 // 3 + (13 if lateset == 'block1' else 0)
        rdone = L.add('B', lambda: [I(y) for y in pack([qreg[('B', e)] for e in range(8)])[n1:] + [own_store(qreg[('B', 0)])]] + (late_blk if lateset == 'block' else []),
                      gK, hard=gKh, preds=[(y, lat) for y in ld.values()] + [b1], slack=0)
        rdone.must = 10**6; rdone.dur = 9 - n1 // 3 + (13 if lateset == 'block' else 0)
        for (e, sh), y in ld.items(): live(qiv, ('B', e), y, b1 if k1 and 0 < e <= k1[1] else rdone)
    else:
        x = None; seq = [(e, int(c == 3)) for e in range(1, 8) for c in range(4 if e < 4 else 3)]; seq.insert(12, (3, 1))
        for k, key in enumerate(seq):
            x = L.add('V', lambda k=k: I(pack([qreg[('B', e)] for e in range(8)])[k]), 0, preds=[(x, 0) if x else None, (ld[key], lat)], slack=10)
            live(qiv, ('B', key[0]), ld[key], x)
        rdone = L.add('G', lambda: I(own_store(qreg[('B', 0)])), 0, preds=[x], slack=2)
        live(qiv, ('B', 0), ld[0, 0], rdone)
    def only3(l, lbl):
        o = [I(y) for y in l]
        for y in o: y.only = [3]
        return [I('s_cmp_lg_u32 s46, 3'), I(f's_cbranch_scc1 {lbl}')] + o + [I(f'{lbl}:')]
    if g3:
        b3 = L.add('B', lambda: only3(pack([qreg[('A', e)] for e in range(8)]) + [own_store(qreg[('A', 0)]), f's_add_u32 s62, s62, {64*PROW}'], 'L_back_k3'), g3, slack=0)
        for e in range(8): live(qiv, ('A', e), PRE + 20 + e, b3)
        rdone.preds.append((b3, 1))
    lk = [[w, q, None, 10**6, None] for w in sorted(wfirst, key=lambda w: (w[0], wfirst[w])) for q in range(4)]
    gb = max(wfirst.values()) - gbm
    nj = nh = 10**6
    for e in reversed(lk):
        w = e[0]
        nh = e[4] = min(wfirst[w] - dhard, nh - 1) if w[0] < P1 else wfirst[w] - dhard - (3 - e[1])
        if w[0] >= P1: nh = 10**6
        else: nj = min(wfirst[w] - 10 - w[2], nj - (2 if w[0] < 5 else n5 / 4)); e[3] = int(nj + 1000.99) - 1000
    j0 = sum(1 for e in lk if e[3] < lk0)
    pts = [(j0, lk0)] + [(j_, g_) for g_, j_ in (knee or [])] + [(len(lk) - 1, gb)]
    for j, e in enumerate(lk):
        if j < j0: e[2] = e[3]; continue
        (ja, ga), (jb, gb_) = next((a, b) for a, b in zip(pts, pts[1:]) if j <= b[0])
        e[2] = min(e[3], int(ga + (j - ja) * (gb_ - ga) / (jb - ja)))
    qk = lambda c, st: ('c', c[0], c[1], st)
    cfirst = {}; cjit = {}
    for w, q, g, jit, _ in lk: cfirst[w[:2]] = min(cfirst.get(w[:2], 10**9), g); cjit[w[:2]] = min(cjit.get(w[:2], 10**9), jit)
    sreg = ['0', 's40', 's41', 's42', 's43', 's44', 's45', 's72']
    def cload(c, st):
        r = qreg[qk(c, st)]
        return f'buffer_load_dwordx4 v[{r}:{r+3}], v{(32, 33, 34, 44)[2*c[1] + st]}, s[12:15], {sreg[c[0]]} offen sc1'
    def chk(c, t): return [f'v_bitop3_b32 v{t}, v{qreg[qk(c, 0)]+3}, v{qreg[qk(c, 1)]+3}, s76 bitop3:0x7e', f'v_cmp_lt_u32 vcc, 0xffff, v{t}']
    corder = sorted(cfirst)
    cbr = {}; sset = {it: L.add('S', lambda it=it: I(f's_mov_b32 {sreg[it]}, {16*PROW*it}'), 12*(it - 1), slack=3) for it in range(1, NIT)}
    for n, c in enumerate(corder):
        lds = []
        for st in range(2):
            if c == (0, 0) or (c == (0, 1) and ('p' in layout or plate)):
                live(qiv, qk(c, st), PRE + 2*n + st); continue
            t = max(cfirst[c] - LA_P + 3*st, 1, g_p[c[0]] if c[0] < 2 else g_p[2 + c[1]])
            pr = [sset.get(c[0])] + ([(rdone, rvis[c[1]])] if c[0] >= 4 else [(b3, rvis[c[1]])] if c[0] == 3 and g3 else [])
            x = L.add('G', lambda c=c, st=st: I(cload(c, st)), t, preds=pr, slack=10, name=f'P{c}{st}')
            x.lines = 32; x.slow = False; x.due = min(cjit[c], cfirst[c] + pdue) - 10
            lds.append((x, LAT_P)); live(qiv, qk(c, st), x)
        nm = f'{c[0]}_{c[1]}'
        if c == (0, 0) or (c == (0, 1) and chk0all): continue
        x = L.add('V', lambda c=c: I(chk(c, treg[c])[0]), max(cfirst[c] - 13, ychk), preds=lds, slack=4)
        y = L.add('V', lambda c=c: I(chk(c, treg[c])[1]), 0, preds=[x], slack=2)
        live(tiv, c, x, y)
        cbr[c] = y.rel = L.add('E', lambda nm=nm: [I(f's_cbranch_vccnz L_slow{nm}'), I(f'L_back{nm}:')], 0, preds=[(y, 2)], slack=1)
    wo = lambda w: (('w', w[0], 3), 4*w[1]) if w[3] == 3 else (('w', w[0], w[1], w[3]), 4*w[2])
    dall = []
    for n, (w, q, g, jit, hard) in enumerate(lk):
        sl = max(3, min(lsl if not ovf1 or g > ovf1[0] else ovf1[1], jit - g + 3, (gb - g) // 3))
        st, sel = (q // 2, q % 2) if w[3] == 3 else (w[2], q)
        v = L.add('V', lambda n=n, w=w, st=st, sel=sel: I(f'v_perm_b32 v{treg[n]}, v{qreg[qk(w, st)] + w[3]}, v35, s{36+sel}'), g - 2, preds=[cbr.get(w[:2])], slack=sl)
        d = L.add('D', lambda n=n, w=w, q=q: I(f'ds_read_b32 a{areg[w]+q}, v{treg[n]}', defs={'lut'}), g, hard=hard, preds=[v], slack=3, name=f'D{w}{q}')
        d.must = wfirst[w] - 3; dall.append(d)
        if follow is not None: v.lead = (d, follow)
        live(tiv, n, v, d); live(xiv, wo(w)[0], d, wlast[w]); live(qiv, qk(w, st), v)
    STG = 1024; TB = 16*RS; EXB = STG + 7*TB
    xo_ = lambda i: (i - 3)*2048 if i >= 3 else RING + 16384 - EXB + i*2048
    assert EXB % 8 == 0 and EXB + 5*2048 <= RING and n5 >= 4
    so_ = lambda i: (i - 1)*TB if i else RING - STG
    s = Stream()
    s('s_mul_i32 s66, s63, 96\ns_lshl_b32 s67, s65, 5\ns_lshl_b32 s70, s64, 2\ns_add_u32 s67, s67, s70\ns_add_u32 s67, s67, 384')
    s('s_mul_i32 s71, s59, 448')
    s('s_add_u32 s70, s66, s71\nv_mad_u32_u24 v22, v3, 24, s70')
    s('s_add_u32 s70, s67, s71\nv_lshl_add_u32 v23, v3, 3, s70')
    s(f's_mov_b32 s34, {N*2}\ns_mov_b32 s35, 0x20000\ns_mov_b32 s26, 256\ns_mov_b32 s27, 0x20000\ns_lshl_b32 s77, s59, 4')
    s(f's_mov_b32 s18, {M*N*2}\ns_mov_b32 s19, 0x20000')
    s(f's_sub_u32 s70, {STG}, s71\nv_mul_u32_u24 v16, {RS}, v4')
    s('v_add3_u32 v26, v22, v16, s70\nv_add3_u32 v28, v23, v16, s70')
    if addtid: s(f's_lshl_b32 s70, s63, 9\ns_add_u32 s60, s70, {EXB}\ns_xor_b32 s70, s70, 512\ns_add_u32 s70, s70, {EXB}\nv_lshl_add_u32 v30, v2, 2, s70')
    else: s(f'v_lshlrev_b32 v29, 3, v0\nv_xor_b32 v30, 512, v29\nv_add_u32 v29, {EXB}, v29\nv_add_u32 v30, {EXB}, v30')
    s('v_mul_u32_u24 v16, 2341, v2\nv_lshrrev_b32 v16, 16, v16')
    s(f's_mul_i32 s73, s63, {4*RS}\ns_add_u32 s73, s73, {STG}')
    s('v_add_lshl_u32 v24, v2, v16, 4\nv_add_u32 v24, s73, v24')
    s(f's_lshl_b32 s74, s58, 7\ns_lshl_b32 s75, s63, 2\ns_add_u32 s74, s74, s75\ns_mul_i32 s74, s74, {N*2}\ns_add_u32 s74, s74, s71')
    s(f'v_mul_u32_u24 v17, {N*2 - 448}, v16\nv_lshl_add_u32 v25, v2, 4, v17')
    s('v_lshrrev_b32 v16, 1, v16\nv_lshlrev_b32 v16, 30, v16\nv_add3_u32 v25, v25, v16, s74')
    assert RS - 448 == 16 and all((l * 2341) >> 16 == l // 28 for l in range(64))
    s('v_mov_b32 v45, 1\nv_lshlrev_b32 v1, 22, v0\nv_mov_b32 v47, s76')
    assert WSUSE <= 1 << 22 and not cpf2 and lateset != 'pre'
    late_l = s.l
    x = None
    for k, y in enumerate(late_l if lateset == 'loop' else []):
        x = L.add(y.kind, lambda y=y: y, 2*k, preds=[(x, 0 if x.kind == 'S' and y.kind == 'V' or x.kind == y.kind == 'V' else 1)] if x else [], slack=30)
    late_blk = late_l
    if isinstance(lateset, int): L.add('B', lambda: late_blk, lateset, slack=0).dur = 13
    if lateset != 'pre': late_l = []
    gs0 = g_sc
    s0 = L.add('G', lambda: I(f'buffer_load_dwordx4 v[{qreg["sp0"]}:{qreg["sp0"]+3}], v22, s[32:35], 0 offen'), gs0)
    s1 = L.add('G', lambda: I(f'buffer_load_dwordx2 v[{qreg["sp1"]}:{qreg["sp1"]+1}], v22, s[32:35], 0 offen offset:16'), gs0 + 6)
    s2 = L.add('G', lambda: I(f'buffer_load_dword v{qreg["sp1"]+2}, v23, s[32:35], 0 offen'), gs0 + 12)
    live(qiv, 'sp0', s0); live(qiv, 'sp1', s1, s2)
    spk = lambda d: qreg['sp0'] + d if d < 4 else qreg['sp1'] + d - 4
    sc = {}
    for t in (3, 0, 1, 2):
        for r in range(4 if t < 3 else 2):
            j = 3*r + t if t < 3 else 12 + r
            f = (lambda t=t, r=r, j=j: I(f'v_lshlrev_b32 v{qreg[("sc",t)]+r}, 16, v{spk(j//2)}')) if j % 2 == 0 else \
                (lambda t=t, r=r, j=j: I(f'v_and_b32 v{qreg[("sc",t)]+r}, 0xffff0000, v{spk(j//2)}'))
            sc[t, r] = L.add('V', f, alast[(t, 0)] - 40, hard=alast[(t, 0)] + DL - 1, preds=[(s0, 50), (s1, 50), (s2, 50)], slack=40)
            live(qiv, ('sc', t), sc[t, r], 10**6); live(qiv, 'sp0', sc[t, r]); live(qiv, 'sp1', sc[t, r])
    x = L.add('G', lambda: I('buffer_atomic_add v45, v1, s[24:27], s77 offen sc0 sc1'), g_at, preds=[s0, s1, s2, bar[6]] + list(cbr.values()), slack=asl)
    for t in (f'v_bitop3_b32 v45, v45, {1 if "a" in dg else 15}, v0 bitop3:0xbe', 'v_lshlrev_b32 v45, 22, v45'):
        x = L.add('V', lambda t=t: I(t), NG - g_ep, preds=[(x, 0)])
    L.add('G', lambda: I('buffer_store_dword v47, v45, s[12:15], s78 offen sc1'), 0, preds=[x])
    def mulq(t, i, pr=()):
        c = ACC(t, i)
        return [L.add('V', lambda r=r: I(f'v_mul_f32 v{c+r}, v{c+r}, v{qreg[("sc",t)]+r}'), alast[(t, i)] + DL, preds=[(sc[t, r], 0)] + ([(pr[r], 0)] if pr else []), slack=8 if t < 2 else 2)
                for r in range(4 if t < 3 else 2)]
    lastst = [None, None]
    lutbar = 1 if grp[1] == 1 else 0
    def e2(i, bar, n, gate=None):
        rds = [L.add('Q', lambda k=('e2', i, j), j=j: I(f'ds_read_b128 v[{qreg[k]}:{qreg[k]+3}], v24 offset:{so_(i) + 2*j*RS}'), 0, preds=[(bar, 2*tsp*n)], slack=j) for j in range(2)]
        for j in range(2):
            k = ('e2', i, j); so = 66 + j
            sm = L.add('S', lambda j=j, so=so: I(f's_mov_b32 s{so}, {(16*i + 2*j)*N*2}'), P2 + j, preds=[lastst[j]], slack=2)
            x = L.add('G', lambda k=k, so=so: I(f'buffer_store_dwordx4 v[{qreg[k]}:{qreg[k]+3}], v25, s[16:19], s{so} offen {aux_out}'), 0,
                      preds=[(rds[j], rl), sm, gate, (lastst[1 - j], tsp) if lastst[1 - j] else None], slack=1)
            live(qiv, k, rds[j], x); lastst[j] = x
        return rds
    assert sum(grp) == 8 and grp[0] == 1
    if addtid: m0ex = L.add('S', lambda: I('s_mov_b32 m0, s60'), P2 - 20, preds=hist[-1:]); assert rot is None
    stg = []; bq = []; i0 = 0; prevg = []; syn = []
    for n in grp:
        tiles = list(range(i0, i0 + n)); i0 += n
        if addtid:
            ex = [L.add('D', lambda c=ACC(3, i), i=i, r=r: I(f'ds_write_addtid_b32 v{c+2+r} offset:{xo_(i) + 256*r}', defs={f'ex{i}'}), alast[(3, i)] + DL, preds=[bar[5] if i < 3 else tbl_free, (m0ex, 2)], slack=3)
                  for i in tiles for r in range(2)]
        else:
            ex = [L.add('W', lambda c=ACC(3, i), i=i: I(f'ds_write_b64 v29, v[{c+2}:{c+3}] offset:{xo_(i)}', defs={f'ex{i}'}), alast[(3, i)] + DL, preds=[bar[5] if i < 3 else tbl_free], slack=3) for i in tiles]
        lut = tiles[0] == lutbar
        fs = fsync and len(bq) in fs_set
        if fs:
            n_ = len(syn); tk = ('sy', n_)
            arr = L.add('W', lambda: I('ds_add_u32 v35, v46 offset:128'), 0, preds=ex + [p for p, _ in stg] + (dall if lut else []) + bq[-1:], slack=0)
            b_ = L.add('D', lambda tk=tk: I(f'ds_read_b32 v{treg[tk]}, v35 offset:128'), 0, preds=[(arr, fsync)], slack=0)
            cm = L.add('V', lambda tk=tk, n_=n_: I(f'v_cmp_gt_u32 vcc, {8*(n_ + 1)}, v{treg[tk]}'), 0, preds=[(b_, rl - 2)], slack=0)
            gate = cm.rel = L.add('E', lambda n_=n_: [I(f's_cbranch_vccnz L_sy{n_}'), I(f'L_syb{n_}:')], 0, preds=[(cm, 2)], slack=0)
            live(tiv, tk, b_, gate); bq.append(gate); spec = [b_]; syn.append((spec, cm))
            if lut: tbl_free = gate
            for m_, i in enumerate(prevg): spec += e2(i, b_, m_, gate)
        else:
            gate = None
            b_ = L.add('B', lambda tiles=tiles, prevg=prevg, lut=lut: I('s_barrier', uses={f'ex{i}' for i in tiles} | {f'stg{i}' for i in prevg} | ({'lut'} if lut else set())), 0,
                       preds=[(x, bw) for x in ex] + stg + ([(d, bw) for d in dall] if lut else []), slack=0)
            bq.append(b_)
            if lut: tbl_free = b_
            for m_, i in enumerate(prevg): e2(i, b_, m_)
        stg = []
        for i in tiles:
            c = ACC(3, i); k = ('ex', i)
            gx = L.add('D', lambda i=i, k=k: I(f'ds_read2st64_b32 v[{qreg[k]}:{qreg[k]+1}], v30 offset0:{xo_(i)//256} offset1:{xo_(i)//256+1}' if addtid else f'ds_read_b64 v[{qreg[k]}:{qreg[k]+1}], v30 offset:{xo_(i)}'), 0, preds=[(b_, 0)], slack=3)
            ad = [L.add('V', lambda r=r, c=c, k=k: I(f'v_add_f32 v{c+r}, v{c+r}, v{qreg[k]+r}'), 0, preds=[(gx, rl), gate], slack=6) for r in range(2)]
            if fs: spec.append(gx)
            mu = mulq(3, i, ad)
            cv = L.add('V', lambda c=c, k=k: I(f'v_cvt_pk_bf16_f32 v{qreg[k]}, v{c}, v{c+1}'), 0, preds=[(y, 0) for y in mu], slack=6)
            x = L.add('W', lambda i=i, k=k: I(f'ds_write_b32 v28, v{qreg[k]} offset:{so_(i)}', defs={f'stg{i}'}), 0, preds=[cv], slack=6)
            live(qiv, k, gx, x)
            stg.append((x, bw))
            mu = {t: mulq(t, i) for t in range(3)}
            cvs = []
            for u in range(3):
                k = ('cv', i, u // 2)
                cvs.append([L.add('V', lambda k=k, u=u, v=v, i=i: I(f'v_cvt_pk_bf16_f32 v{qreg[k]+2*(u%2)+v}, v{ACC((4*u+2*v)%3, i) + (4*u+2*v)//3}, v{ACC((4*u+2*v+1)%3, i) + (4*u+2*v+1)//3}'),
                            0, preds=[(mu[j % 3][j // 3], 0) for j in (4*u + 2*v, 4*u + 2*v + 1)], slack=3 + u) for v in range(2)])
            for u in range(3):
                k = ('cv', i, u // 2)
                x = L.add('W', lambda k=k, u=u, i=i: I(f'ds_write_b64 v26, v[{qreg[k]+2*(u%2)}:{qreg[k]+2*(u%2)+1}] offset:{so_(i) + 8*u}', defs={f'stg{i}'}), 0,
                          preds=(cvs[u] if i != 7 else cvs[0] + cvs[1] + cvs[2]) + [tbl_free if i else bar[5]] + ([(x, wsp)] if u and wsp else []), slack=2)
                live(qiv, k, x, *cvs[u]); stg.append((x, bw))
        if fs: gate.preds += [(y, 0) for y in spec]
        prevg = tiles
    bfin = L.add('B', lambda: I('s_barrier', uses={f'stg{i}' for i in prevg}), 0, preds=stg, slack=0)
    for i in prevg: e2(i, bfin, 0)
    L.gsp2 = (P2, min(tsp, gsp)); L.shift = shift; L.mix = mix
    L.run(-60)
    if verbose: print('  barriers', sorted(set(v.gap for v in vis.values())), 'tiles', [b.gap for b in bq], 'round store', rdone.gap, 'overflow', L.novf, 'lost', int(L.lost))
    if verbose and fifo: print('  G:', ' '.join(f'{x.name or "r"}@{x.gap}>{int(x.fin)}' for x in sorted((x for x in L.its if hasattr(x, 'fin')), key=lambda x: x.gap)).replace('(', '').replace(')', '').replace(', ', ''))
    def iv(d, ext=0):
        o = {}
        for k, v in d.items():
            gs = [x.gap if isinstance(x, It) else x for x in v]
            o[k] = (min(gs), max(gs) + ext)
        return o
    xreg.update(linscan(iv(xiv), [8*k for k in range(32)], 'octets', verbose))
    areg.update({w: xreg[wo(w)[0]] + wo(w)[1] for w in wfirst})
    qreg.update(linscan(iv(qiv, 1), [64 + 4*k for k in range(16)] + [48, 52], 'quads', verbose))
    treg.update(linscan(iv(tiv), list(range(56, 64)) + ([5, 6, 7, 27, 29, 31] + [46][:not fsync] if follow is not None and addtid else [5, 6, 7, 27, 31, 46] if follow is not None else []), 'temps', verbose))
    cnt = {}
    def skip(x, g=0):
        if g >= 112:
            cnt[x.op] = cnt.get(x.op, 0) + 1
            if 'Q' in dg and x.op == 'ds_read_b128' and x.text.split()[1][0] == 'a' and cnt[x.op] % 2: return True
            if 'D' in dg and x.op == 'ds_read_b32' and cnt[x.op] % 2: return True
            if 'V' in dg and x.op == 'v_perm_b32' and cnt[x.op] % 2: return True
            if 'L' in dg and x.text.endswith('lds') and cnt[x.op] % 2: return True
        if g >= P2:
            if '1' in dg and x.op == 's_barrier': return True
            if '2' in dg and x.op.startswith('ds_write'): return True
            if '3' in dg and x.op == 'buffer_store_dwordx4': return True
            if '4' in dg and x.op in ('v_mul_f32', 'v_add_f32', 'v_cvt_pk_bf16_f32'): return True
            if '5' in dg and x.op.startswith('ds_read') and x.text.split()[1][0] == 'v': return True
        if 'e' in dg and x.op == 'buffer_store_dword': return True
        if 'a' in dg and x.op == 'buffer_atomic_add': return True
        if 's' in dg and 'store' in x.op and ('s62' in x.text or 's60' in x.text): return True
        if 'c' in dg and x.op in ('v_bitop3_b32', 'v_cmp_lt_u32', 's_cbranch_vccnz'): return True
        if 'l' in dg and 's[4:7]' in x.text: return True
        if 'x' in dg and x.text.endswith('lds'): return True
        if 'y' in dg and 'load' in x.op and 's[12:15]' in x.text: return True
        if 'b' in dg and x.op == 's_barrier': return True
        return False
    def emit(s, g):
        for it in L.items(g):
            r = it.fn()
            for x in (r if isinstance(r, list) else [r]):
                if skip(x, g): continue
                if 'p' in dg and 'load' in x.op: x = I(x.text.replace(' sc1', ''), defs=x.defs, uses=x.uses)
                s(x)

    s = Stream()
    def stamp(k):
        if stamps: s(f's_waitcnt lgkmcnt(0)\ns_memtime s[100:101]\ns_waitcnt lgkmcnt(0)\ns_sub_u32 s{(96, 97, 53, 54)[k]}, s100, s82')
    s('s_cmp_ge_u32 s2, 256\ns_cbranch_scc1 L_end')
    if skew:
        s('s_memrealtime s[80:81]\ns_waitcnt lgkmcnt(0)\ns_lshr_b32 s82, s80, 12\ns_lshl_b32 s82, s82, 3\ns_and_b32 s83, s2, 7\ns_add_u32 s82, s82, s83')
        s(f's_mul_i32 s82, s82, 0x9e3779b1\ns_lshr_b32 s83, s82, 15\ns_xor_b32 s82, s82, s83\ns_mul_i32 s82, s82, 0x85ebca6b\ns_mul_hi_u32 s82, s82, {skew}\ns_add_u32 s82, s82, s80')
        s('L_skew:\ns_memrealtime s[80:81]\ns_waitcnt lgkmcnt(0)\ns_cmp_lt_u32 s80, s82\ns_cbranch_scc1 L_skew')
    if stamps: s('s_memrealtime s[80:81]\ns_memtime s[82:83]')
    s('s_load_dwordx2 s[4:5], s[0:1], 8\ns_load_dwordx2 s[12:13], s[0:1], 48\ns_load_dwordx2 s[8:9], s[0:1], 0\ns_load_dwordx2 s[28:29], s[0:1], 16')
    s(f's_getpc_b64 s[48:49]\nL_pc:\ns_mov_b32 s50, CODE_BYTES\ns_mov_b32 s51, 0x20000')
    s('s_lshr_b32 s61, s2, 3\nv_lshl_add_u32 v46, v0, 5, s61\nv_lshlrev_b32 v46, 7, v46')
    s('buffer_load_dword v1, v46, s[48:51], 0 offen offset:256')
    lm = {2: 1, 4: 2, 8: 3, 16: 4}[xm]
    gm = 16 // xm; lgm = 4 - lm
    s('v_lshrrev_b32 v5, 6, v0\nv_and_b32 v2, 63, v0')
    s('s_and_b32 s60, s2, 7')
    s('v_readfirstlane_b32 s63, v5')
    s(f's_and_b32 s58, s60, {gm-1}\ns_lshl_b32 s58, s58, {lm}\ns_and_b32 s62, s61, {xm-1}\ns_add_u32 s58, s58, s62')
    s(f's_lshr_b32 s59, s60, {lgm}\ns_lshl_b32 s59, s59, {5-lm}\ns_lshr_b32 s62, s61, {lm}\ns_add_u32 s59, s59, s62')
    s('v_mul_u32_u24 v18, 12, v2')
    s('s_lshl_b32 s60, s63, 4\ns_add_u32 s60, s60, s58')
    s(f's_mul_i32 s61, s60, {8*QROW}\ns_mul_i32 s79, s59, 896\ns_add_u32 s61, s61, s79')
    s(f's_mov_b32 s6, {K*QROW}\ns_mov_b32 s7, 0x20000')
    s(f's_lshl_b32 s78, s59, 7\ns_add_u32 s78, s78, {EOFF + 12}')
    s('v_and_b32 v4, 15, v2\nv_lshrrev_b32 v3, 4, v2')
    s('v_and_b32 v12, 1, v3\nv_lshlrev_b32 v13, 1, v12\nv_xor_b32 v13, v13, v4\nv_lshrrev_b32 v19, 1, v3\nv_lshl_add_u32 v19, v19, 4, v13')
    s(f's_bfe_u32 s70, s58, 0x10002\ns_xor_b32 s70, s70, 1\nv_xor_b32 v12, s70, v12\nv_mul_u32_u24 v12, {QROW}, v12\nv_add_lshl_u32 v19, v19, v12, 2\nv_add_u32 v19, 768, v19')
    progs = list(dict.fromkeys(roles)); rid = [progs.index(r) for r in roles]
    s(f's_mov_b32 s46, {rid[3]}')
    for w_ in range(3):
        if rid[w_] != rid[3]: s(f's_cmp_lg_u32 s63, {w_}\ns_cbranch_scc1 L_role{w_}\ns_mov_b32 s46, {rid[w_]}\nL_role{w_}:')
    nst = 0 if test_help or 's' in dg else 1
    neg = Stream()
    for g in range(-60, 0): emit(neg, g)
    neg = neg.l
    def set_d(s):
        s('v_lshlrev_b32 v16, 1, v4\nv_lshrrev_b32 v17, 4, v0\nv_lshlrev_b32 v17, 1, v17')
        s(f's_mov_b32 s30, 32\ns_mov_b32 s31, 0x20000')
        s('v_lshrrev_b32 v6, 3, v2\nv_and_b32 v7, 7, v2\nv_xor_b32 v13, v7, v3')
        s('s_lshl_b32 s70, s63, 5\nv_add_lshl_u32 v12, v6, s70, 11')
        s('v_lshl_add_u32 v36, v13, 4, v12\nv_xor_b32 v37, 64, v36')
        s(f'v_add_u32 v37, {8*2048-1024}, v37')
        if rot is None: s(f'v_add_u32 v38, {2*(8*2048-1024)}, v36\nv_add_u32 v39, {2*(8*2048-1024)}, v37')
        s(f's_mov_b32 s10, {M*K*2}\ns_mov_b32 s11, 0x20000')
        s('s_lshl_b32 s55, s58, 18\ns_and_b32 s71, s58, 8\ns_lshl_b32 s70, s71, 4\ns_add_u32 s55, s55, s70\ns_lshl_b32 s57, s63, 12')
        if rot is None: s(f's_xor_b32 s69, s55, 128\ns_add_u32 s57, s57, {RING}')
        else: s(f's_and_b32 s70, s59, {rot & 1}\ns_lshl_b32 s71, s70, 15\ns_xor_b32 s55, s55, s71\ns_lshl_b32 s71, s70, 11\ns_xor_b32 s57, s57, s71')
    def set_n(s):
        s(f's_mov_b32 s14, {WSUSE}\ns_mov_b32 s15, 0x20000')
        s('s_lshl_b32 s68, s59, 17\ns_lshl_b32 s62, s60, 10\ns_add_u32 s62, s62, s68\nv_lshlrev_b32 v20, 4, v2')
    def set_s(s):
        s('s_and_b32 s64, s63, 1\ns_lshr_b32 s65, s63, 1')
        s('s_and_b32 s70, s58, 8\ns_lshl_b32 s70, s70, 10\ns_lshl_b32 s71, s64, 12\ns_add_u32 s70, s70, s71\ns_lshl_b32 s71, s63, 8\ns_add_u32 s70, s70, s71\ns_add_u32 s70, s70, s68')
        s('v_lshl_add_u32 v32, v4, 4, s70\nv_lshl_add_u32 v32, v3, 10, v32\nv_xor_b32 v33, 4096, v32\nv_xor_b32 v34, 8192, v32\nv_xor_b32 v44, 12288, v32')
        for b in range(4): s(f's_mov_b32 s{36+b}, {0x0c0c0000 | ((4+b) << 8)}')
        s('v_and_b32 v35, 31, v2\nv_lshlrev_b32 v35, 2, v35')
        s(f's_lshl_b32 s70, s64, 6\ns_add_u32 s70, s70, {RING}')
        s('v_lshrrev_b32 v12, 1, v4\nv_xor_b32 v12, v12, v3\nv_lshlrev_b32 v12, 4, v12\nv_lshl_add_u32 v12, v4, 7, v12')
        s('v_xor_b32 v40, s70, v12\nv_xor_b32 v41, 64, v40\nv_add_u32 v42, 65536, v40\nv_add_u32 v43, 65536, v41')
        s('s_mov_b32 s52, 0')
        if cpf2: s('v_add_u32 v45, 16384, v46')
        if rot is not None: s(f's_and_b32 s70, s59, {rot & 2}\ns_lshl_b32 s71, s70, 6\ns_xor_b32 s69, s55, s71\ns_lshl_b32 s71, s70, 13\ns_xor_b32 s60, s57, s71')
    sets = {'d': set_d, 'n': set_n, 's': set_s}
    for ch in pre: sets[ch](s)
    s('s_waitcnt lgkmcnt(0)')
    s('s_load_dword s76, s[12:13], s78')
    def pt(s, ch):
        if pticks and ch in pticks: s(f's_memtime s[{84+2*pticks.index(ch)}:{85+2*pticks.index(ch)}]')
    pt(s, '0')
    def emit_dma(s, it, a=0, b=8):
        for m0, so, d in dma(it)[a:b]:
            if m0: s(m0)
            if so: s(so)
            s(d)
    def block(ch):
        s = Stream()
        if ch == 'X':
            for e, sh in rows:
                s((sh_load if sh else own_load)(128 + 4*e))
                if sh or e > 3: s(f's_add_u32 s61, s61, {QROW if e < 7 else (512 - 7)*QROW}')
        if ch == 'L':
            if 'd' not in pre: set_d(s)
            s('buffer_load_ushort v16, v16, s[28:31], 0 offen\nbuffer_load_ushort v17, v17, s[28:31], 0 offen')
        if ch == 'D': emit_dma(s, 0, 0, 4)
        if ch == 'd': emit_dma(s, 0, 4, 8)
        if ch == 'S':
            s('s_load_dwordx2 s[32:33], s[0:1], 24\ns_load_dwordx2 s[16:17], s[0:1], 32\ns_load_dwordx2 s[24:25], s[0:1], 40')
            for c_ in 'ns':
                if c_ not in pre: sets[c_](s)
            for y in late_l: s(I(y.text.replace('v16', 'v12').replace('v17', 'v13')))
            s('v_lshlrev_b32 v8, 4, v7\nv_lshl_add_u32 v8, v0, 8, v8')
            for j in range(1, 8): s(f'v_xor_b32 v{8 + j}, {16*j}, v8')
        if ch == 'G': s(f's_waitcnt lgkmcnt(0)\ns_add_u32 s76, s76, {TAGC}')
        if ch == 'K':
            for x in pack([128 + 4*e for e in range(8)]): s(x)
            if nst: s(own_store(128))
            s(f's_add_u32 s62, s62, {64*PROW}')
        if ch == 'T':
            if fsync: s('v_mov_b32 v46, 0'); s('ds_write_b32 v35, v46 offset:128', defs={'tbl'}); s('v_mov_b32 v46, 1')
            for r in range(56, 60): s(f'v_lshl_or_b32 v{r}, v17, 16, v16')
            for j in range(8): s(f'ds_write_b128 v{8 + j}, v[56:59]', defs={'tbl'})
        if ch == 'W' and pads: s('L_WARM:')
        if ch == 'B': s('s_barrier', uses={'tbl', 'dma00'} | (set() if 0 in split else {'dma01'}))
        if ch in 'Pp':
            for st in range(2): s(cload((0, int(ch == 'p')), st))
        if ch == 'Q':
            for x in neg:
                if x.op == 'ds_read_b128': s(x)
        if ch == 'F':
            s('s_lshl_b32 s70, s59, 3\ns_lshl_b32 s71, s58, 7\ns_add_u32 s70, s70, s71\ns_lshl_b32 s70, s70, 11')
            s(f'v_lshlrev_b32 v27, 7, v7\nv_lshl_add_u32 v27, v6, 11, v27\nv_add_u32 v21, {8 - xf}, v7\nv_lshrrev_b32 v21, 3, v21\nv_lshl_add_u32 v27, v21, 30, v27')
            s('buffer_load_dword v27, v27, s[8:11], s70 offen')
        if ch == 'E': emit_dma(s, 1, 0, dma1)
        pt(s, ch)
        return s.l
    blocks = {ch: block(ch) for ch in layout}
    head = s.l
    s = Stream()
    s('L_chk0:')
    for x in chk((0, 0), 12): s(x)
    s('s_cbranch_vccnz L_retry0')
    pt(s, 'C')
    if plate == 1:
        for st in range(2): s(cload((0, 1), st))
    pv = [x for x in neg if x.kind == 'V']
    dd = [x for x in neg if x.op == 'ds_read_b32']
    assert len(pv) + len(dd) + 16 == len(neg)
    assert len(set(tuple(x.w) for x in pv[:8])) == 8 and len(set(tuple(x.w) for x in pv[8:])) == len(pv) - 8
    for x in pv[:8] + dd[:8] + pv[8:] + dd[8:]: s(x)
    if plate == 2:
        for st in range(2): s(cload((0, 1), st))
    if g3:
        l = []
        for e, sh in rows:
            l.append((sh_load if sh else own_load)(qreg[('A', e)]))
            if sh or e > 3: l.append(f's_add_u32 s61, s61, {QROW if e < 7 else (512 - 7)*QROW}')
        for x in only3(l, 'L_x3'): s(x)
    if chk0all:
        for x in chk((0, 1), 12): s(x)
    stamp(0)
    s('s_cbranch_vccz L_main')
    s('L_retry0:')
    n0 = len(s.l)
    if stamps: s('s_or_b32 s52, s52, 0x10000')
    s(f's_add_u32 s52, s52, 1\ns_and_b32 s23, s52, {SPIN - 1}\ns_cbranch_scc1 L_retry0b\ns_mov_b32 s22, {kap[0]}\ns_call_b64 s[20:21], L_help\nL_retry0b:')
    for k in range(4 if 'p' in layout else 2): s(cload((0, k // 2), k % 2))
    s('s_waitcnt vmcnt(0) lgkmcnt(0)\ns_branch L_chk0')
    def stubs(o):
        for n_, (spec, cm) in enumerate(syn):
            o(f'L_sy{n_}:')
            for y in spec: o(y.fn().text)
            o('s_waitcnt lgkmcnt(0)'); o(cm.fn().text)
            o(f's_cbranch_vccnz L_sy{n_}\ns_branch L_syb{n_}')
        o(f'L_tick:\ns_add_u32 s52, s52, 1\ns_and_b32 s23, s52, {SPIN - 1}\ns_cbranch_scc0 L_help\ns_setpc_b64 s[20:21]')
        for c in sorted(corder, key=lambda c: (c[0] % 4, c)):
            if c not in cbr: continue
            nm = f'{c[0]}_{c[1]}'
            o(f'L_slow{nm}:')
            if stamps: o(f's_or_b32 s52, s52, {1 << (16 + c[0])}')
            o(f's_mov_b32 s22, {c[0]}\ns_call_b64 s[20:21], L_tick')
            o(cload(c, 0)); o(cload(c, 1))
            o('s_waitcnt vmcnt(0)')
            for x in chk(c, 12): o(x)
            o(f's_cbranch_vccnz L_slow{nm}\ns_branch L_back{nm}')
    if near: stubs(s)
    for x in s.l[n0:]: x.role = (2,)
    if pads: s('.p2align 12')
    s('L_main:')
    for g in range(NG):
        t, i, w, x, o_ = mf[g]
        c = ACC(t, i)
        src = '0' if g == afirst[(t, i)] else f'v[{c}:{c+3}]'
        A, B = areg[w], xreg[x] + o_
        s(f'v_mfma_f32_16x16x32_bf16 v[{c}:{c+3}], a[{A}:{A+3}], a[{B}:{B+3}], {src}')
        if g in ticks: s(f's_mem{"real" if rt else ""}time s[{84+2*ticks.index(g)}:{85+2*ticks.index(g)}]')
        if g == P2 - 1 and stamps: s('s_memrealtime s[14:15]'.replace('14:15', '98:99'))
        if g == P2 - 1 and not ticks: stamp(1)
        if g == NG - 1 and not ticks: stamp(2)
        emit(s, g)
        if pause and g in pause:
            for _ in range(pause[g] // 64): s('s_nop 15')
        if dnop and dnop[0] <= g < dnop[1] and g % dnop[2] == 0: s('s_nop 7')
    for g in range(NG, max(L.g) + 1): emit(s, g)
    stamp(3)
    tail = s.l
    hot = [x for x in tail if not hasattr(x, 'role')]
    need = {}
    for r, prog in enumerate(progs):
        lin = list(head)
        for ch in prog: lin += [I(f's_waitcnt vmcnt({clk})')] if ch == 'c' else blocks[ch]
        lin += [x for x in hot if r in getattr(x, 'only', [r])]
        own = set(map(id, lin)); out = insert_waits(lin, age_l=age_l, hmin=hmin); verify_waits(out)
        for a, b in zip(out, out[1:]):
            if id(a) not in own:
                m1 = re.search(r'vmcnt\((\d+)\)', a.text); m2 = re.search(r'lgkmcnt\((\d+)\)', a.text)
                need.setdefault(id(b), {})[r] = (int(m1.group(1)) if m1 else 99, int(m2.group(1)) if m2 else 99)
    nlab = [0]
    def with_waits(l, users, inloop=False, prim=None):
        o = []
        for x in l:
            if x.text == ('L_back_k3:' if g3 else 'L_main:'): inloop = True
            d = need.get(id(x))
            if d and hasattr(x, 'only'):
                y = I(f's_waitcnt vmcnt({d[3][0]})'); y.only = [3]; o.append(y); assert d[3][1] == 99
            elif d:
                lg = min(v[1] for v in d.values()); vm = {r: d.get(r, (99, 99))[0] for r in users}
                if inloop: vm = {r: min(vm.values()) for r in users}
                if prim is not None: vm = {r: vm[prim] for r in users}
                lv = sorted(set(vm.values()), reverse=True)
                t = ' '.join(([f'vmcnt({lv[0]})'] if lv[0] < 99 else []) + ([f'lgkmcnt({lg})'] if lg < 99 else []))
                if t: o.append(I('s_waitcnt ' + t))
                if len(lv) > 1:
                    nlab[0] += 1
                    for hi, lo in zip(lv, lv[1:]):
                        for r in users:
                            if vm[r] == hi: o += [I(f's_cmp_eq_u32 s46, {r}'), I(f's_cbranch_scc1 L_rw{nlab[0]}')]
                        y = I(f's_waitcnt vmcnt({lo})'); y.only = [r for r in users if vm[r] <= lo]; o.append(y)
                    o.append(I(f'L_rw{nlab[0]}:'))
            o.append(x)
        return o
    allr = list(range(len(progs)))
    def edge(frm, nxt_layout):
        o = []; tg = {}
        for r, prog in enumerate(progs):
            if frm is not None and frm not in prog: continue
            k = 0 if frm is None else prog.index(frm) + 1
            w_ = None
            if k < len(prog) and prog[k] == 'c': w_ = clk; k += 1
            to = prog[k] if k < len(prog) else '$'
            if to == 'K' and r != kprim:
                w_ = min(v[r][0] for n, x in enumerate(blocks['K']) for v in [need.get(id(x), {})] if r in v) if any(r in need.get(id(x), {}) for x in blocks['K']) else w_
            tg[r] = (to, w_)
        rs = sorted(tg, key=lambda r: tg[r][0] == nxt_layout)
        for n, r in enumerate(rs):
            to, w_ = tg[r]; last = n == len(rs) - 1 or all(tg[q] == tg[r] for q in rs[n:])
            lbl = 'L_chk0' if to == '$' else f'L_{to}'
            if last:
                if w_ is not None: y = I(f's_waitcnt vmcnt({w_})'); y.only = rs[n:]; o.append(y)
                if to != nxt_layout: o.append(I(f's_branch {lbl}'))
                break
            if w_ is None: o += [I(f's_cmp_eq_u32 s46, {r}'), I(f's_cbranch_scc1 {lbl}')]
            else:
                nlab[0] += 1; y = I(f's_waitcnt vmcnt({w_})'); y.only = [r]
                o += [I(f's_cmp_lg_u32 s46, {r}'), I(f's_cbranch_scc1 L_ed{nlab[0]}'), y, I(f's_branch {lbl}'), I(f'L_ed{nlab[0]}:')]
        return o
    fin = {None: with_waits(head, allr) + edge(None, layout[0])}
    for n, ch in enumerate(layout):
        users = [r for r in allr if ch in progs[r]]
        fin[ch] = [I(f'L_{ch}:')] + with_waits(blocks[ch], users, prim=kprim if ch == 'K' else None) + edge(ch, layout[n + 1] if n + 1 < len(layout) else '$')
    ftail = with_waits(tail, allr)
    for r, prog in enumerate(progs):
        lin = fin[None] + [x for ch in prog if ch != 'c' for x in fin[ch]] + [x for x in ftail if not hasattr(x, 'role')]
        lin = [x for x in lin if r in getattr(x, 'only', [r])]
        verify_waits(lin)
    st = fin[None] + [x for ch in layout for x in fin[ch]] + ftail
    st, probs = check_hazards(st, fix=True)
    if verbose:
        for p in probs: print('  nop:', p)
    lab = {x.text[:-1]: k for k, x in enumerate(st) if x.kind == 'L' and x.text.endswith(':')}
    m0 = lab['L_main'] + 1
    sz = sizes(st[m0:])
    tot = sum(sz)
    if pads:
        pos = [m0]; addr = 4; nxt = 4096; best = None; fill = 0
        for k, x in enumerate(st[m0:]):
            if addr >= nxt and (x.kind == 'M' or fill > 6) and x.kind != 'L':
                if addr <= nxt + 56:
                    if best is None or fill < best[0]: best = (fill, m0 + k)
            if addr > nxt + 56:
                assert best, 'no pad position'
                pos.append(best[1]); addr += 4; nxt += 4096; best = None
            fill = 0 if x.kind == 'M' else fill + (x.kind != 'L')
            addr += sz[k]
        if addr + 4 > nxt: pos.append(best[1] if best else len(st))
        npad = len(pos)
        assert npad <= 6
        first = warm
        for n, p in reversed(list(enumerate(pos))):
            st[p:p] = [I(f'L_pad{n}:'), I(f's_cbranch_execz {"L_warmed" if n + 1 in first.values() or n == npad - 1 else f"L_pad{n+1}"}')]
        w = [I('s_mov_b64 exec, 0')]
        for wv_, k in first.items():
            if k < npad: w += [I(f's_cmp_eq_u32 s63, {wv_}'), I(f's_cbranch_scc1 L_pad{k}')]
        w += [I('L_warmed:'), I('s_mov_b64 exec, -1')]
        st[lab['L_WARM']:lab['L_WARM'] + 1] = w
    nfill = {}; cur = None
    for x in st:
        if x.kind == 'M':
            if cur is not None: nfill[cur] = nfill.get(cur, 0) + 1
            cur = 0
        elif cur is not None and x.kind != 'L': cur += 1
    if verbose: print('  fillers/gap histogram', sorted(nfill.items()), 'loop bytes', tot)
    body = render(st).replace('CODE_BYTES', 'L_code_end-L_pc')
    if stamps:
        a = Asm()
        a('s_memrealtime s[78:79]\ns_waitcnt vmcnt(0) lgkmcnt(0)\ns_sub_u32 s78, s78, s80')
        a('s_sub_u32 s98, s98, s80')
        ex = [(96, 79), (54, 79)]
        if pticks:
            for k in range(6): a(f's_sub_u32 s{40+k}, s{84+2*k}, s82')
            ex += [(40+k, 79) for k in range(6)]
        for k in range(len(ticks)): a(f's_sub_u32 s{40+k}, s{84+2*k}, s{80 if rt else 82}')
        ex += [(40+k, 79) for k in range(len(ticks))]
        if not ticks: ex += [(97, 79), (53, 79)]
        ex += [(98, 79), (78, 79), (52, 79)]
        a('s_mov_b32 s79, 0')
        if swave: a(f'v_xor_b32 v0, {64*swave}, v0')
        stamp_end(a, 80, 64, 2, 8, nst=4+len(ex), extra=ex)
        body += a.text()
        if verbose: print('  nstamp', 4 + len(ex))
    body += 'L_end:\n    s_endpgm\n'
    o = Stream()
    if not near: stubs(o)
    o('L_help:\ns_mov_b32 s53, s61\ns_mov_b32 s54, s62')
    o(f's_mul_i32 s61, s22, {128*QROW}\ns_add_u32 s61, s61, s79')
    o('s_lshl_b32 s62, s22, 14\ns_add_u32 s62, s62, s68')
    o('s_mov_b32 s22, 0')
    o('L_help_row:')
    o('v_mov_b32 v21, v19\ns_xor_b32 s23, s22, s58\ns_bitcmp0_b32 s23, 2\ns_cbranch_scc1 L_help_same')
    o(f'v_add_u32 v12, {4*QROW}, v19\nv_subrev_u32 v13, {4*QROW}, v19\nv_min_u32 v21, v12, v13\nL_help_same:')
    o('v_mov_b32 v8, 0\nv_mov_b32 v9, 0\nv_mov_b32 v10, 0\nv_mov_b32 v11, 0\ns_mov_b32 s23, 0')
    o('L_help_e:')
    o('v_mov_b32 v15, 0')
    o(own_load(12))
    o('s_cmp_ge_u32 s23, 16\ns_cbranch_scc1 L_help_own')
    o(sh_load(12, 21))
    o('L_help_own:\ns_waitcnt vmcnt(0)')
    for c in range(4): o(f'v_lshl_or_b32 v{8+c}, v{12+c}, s23, v{8+c}')
    o(f's_add_u32 s61, s61, {QROW}')
    o('s_add_u32 s23, s23, 4\ns_cmp_lt_u32 s23, 32\ns_cbranch_scc1 L_help_e')
    o(tagged(11)); o('s_nop 1')
    o(own_store(8))
    o(f's_add_u32 s62, s62, {PROW}')
    o('s_waitcnt vmcnt(0)')
    o('s_add_u32 s22, s22, 1\ns_cmp_lt_u32 s22, 16\ns_cbranch_scc1 L_help_row')
    o('s_mov_b32 s61, s53\ns_mov_b32 s62, s54')
    o('s_setpc_b64 s[20:21]')
    body += render(o.finish(verbose=False)) + 'L_code_end:\n'
    return body

NOTES = """;
; Weights: the 16 workgroups of a column group pack the int32 codes cooperatively, 8 codes per word, into d_ws (write-through stores).
;   granules of earlier launches never match. Consumers check the tags of every load and re-load until they match; a wave that waits too
;   long packs the missing K block itself, so no residency or placement is assumed. The last workgroup of a group to count itself in
; x tile: LDS-DMA ring of three K128 stages (XOR-swizzled). The last K blocks run row tile by row tile with the weights held in registers,
;   so scaling, bf16 conversion, LDS staging and the output stores overlap the MFMAs.
; L_pad*: branch pads at the 4 KiB code pages, visited once with EXEC = 0 (branches only) to get those lines into the instruction cache.
"""
def build(**kw):
    return single(gemm_kernel(**kw), 256, 256, 163840, vgpr=512, accum=256, sgpr=102, notes=NOTES)
def kdict(**kw):
    return dict(name=KNAME, body=gemm_kernel(**kw), grid=256, block=256, lds=163840, vgpr=512, accum=256, sgpr=102)
if __name__ == '__main__':
    open('standalone__normalfloat_lut_af4__prompt.s', 'w').write(build())
```
